```python
import torch

def _softmax(x, axis=-1):
    return torch.softmax(x, dim=axis)
def _gelu(x):
    return torch.nn.functional.gelu(x, approximate="tanh")
def _silu(x):
    return torch.nn.functional.silu(x)
def _sigmoid(x):
    return torch.sigmoid(x)
def _layernorm(x, axis=-1, eps=1e-5):
    m = x.mean(dim=axis, keepdim=True)
    v = x.var(dim=axis, keepdim=True, unbiased=False)
    return (x - m) / torch.sqrt(v + eps)
def _scatter_add(tgt, idx, src, axis=0):
    return tgt.clone().index_add_(axis, idx, src)
def _segment_sum(src, seg, n):
    out = torch.zeros((n,) + src.shape[1:], dtype=src.dtype)
    return out.index_add_(0, seg, src)
def _pad(x, pw):
    flat = tuple(v for pair in reversed(pw) for v in pair)
    return torch.nn.functional.pad(x, flat)

kernel_name = 'standalone__gqa_softmax__near_ridge'

def setup_inputs():

    _w = (lambda a: (lambda t: t.to(torch.bfloat16) if t.is_floating_point() else t)(torch.as_tensor(a)))
    B, Hq, Hkv, Sq, Sk, D = 8, 32, 32, 240, 1024, 128
    return {
        "q": _w((lambda *s: torch.randn(*s, dtype=torch.bfloat16) * 0.8)(B, Hq, Sq, D)),
        "k": _w((lambda *s: torch.randn(*s, dtype=torch.bfloat16) * 0.8)(B, Hkv, Sk, D)),
        "v": _w((lambda *s: torch.randn(*s, dtype=torch.bfloat16) * 0.05)(B, Hkv, Sk, D)),
    }

def reference(q, k, v):
    B, Hq, Sq, D = q.shape
    Hkv = k.shape[1]
    rep = Hq // Hkv
    k = (lambda x, n, axis: torch.repeat_interleave(x, n, dim=axis))(k, rep, axis=1)
    v = (lambda x, n, axis: torch.repeat_interleave(x, n, dim=axis))(v, rep, axis=1)
    scale = D ** -0.5
    scores = torch.einsum("bhqd,bhkd->bhqk", q, k) * scale
    p = _softmax(scores, axis=-1)
    return torch.einsum("bhqk,bhkd->bhqd", p, v)
```

```python
import sys

NT = 16
KRING = 0
VRING = 65536

out = []
def e(s): out.append("    " + s)
def lab(s): out.append(s + ":")

V_TID = 0; V_T0 = 1; V_M = 2; V_L = 3; V_MC = 4; V_AL = 5; V_T1 = 6; V_T2 = 7; V_T3 = 8; V_SUM = 9
V_VOK0 = 10; V_VOK1 = 11; V_VOV = 12; V_QOFF = 13; V_OOFF = 14; V_T4 = 15
KADDR = 16
VADDR = 24
Q0 = 32
O0 = 64
S0 = [128, 160]
P0 = 192
KF0 = 208; NKF = 6
VF0 = 232; NVF = 6
S_Q = 12; S_K = 16; S_V = 20; S_O = 24
S_KOFF = 28; S_VOFF = 29; S_CNT = 30; S_W = 31; S_WK = 32; S_WV = 33; S_C = 34

def vr(a, n): return "v[%d:%d]" % (a, a + n - 1)

class LG:
    def __init__(s): s.q = []
    def issue(s, tag): s.q.append(tag)
    def wait(s, tag):
        if tag in s.q:
            i = s.q.index(tag)
            n = len(s.q) - 1 - i
            e("s_waitcnt lgkmcnt(%d)" % n)
            s.q = s.q[i + 1:]
lg = LG()

def dma_k(stage):
    e("s_add_u32 m0, s%d, %d" % (S_WK, stage * 16384))
    e("s_nop 0")
    e("buffer_load_dwordx4 v%d, s[%d:%d], s%d offen lds" % (V_VOK0, S_K, S_K + 3, S_KOFF))
    e("buffer_load_dwordx4 v%d, s[%d:%d], s%d offen offset:1024 lds" % (V_VOK1, S_K, S_K + 3, S_KOFF))
    e("s_add_u32 s%d, s%d, 16384" % (S_KOFF, S_KOFF))

def dma_v(stage):
    e("s_add_u32 m0, s%d, %d" % (S_WV, stage * 16384))
    e("s_nop 0")
    e("buffer_load_dwordx4 v%d, s[%d:%d], s%d offen lds" % (V_VOV, S_V, S_V + 3, S_VOFF))
    e("buffer_load_dwordx4 v%d, s[%d:%d], s%d offen offset:1024 lds" % (V_VOV, S_V, S_V + 3, S_VOFF))
    e("s_add_u32 s%d, s%d, 16384" % (S_VOFF, S_VOFF))

def kread(idx, stage):
    b, s = idx >> 3, idx & 7
    f = KF0 + 4 * (idx % NKF)
    e("ds_read_b128 %s, v%d offset:%d" % (vr(f, 4), KADDR + s, stage * 16384 + b * 8192))
    lg.issue(("k", idx))

def vread(idx, stage):
    db, ks = idx >> 2, idx & 3
    f = VF0 + 4 * (idx % NVF)
    e("ds_read_b64_tr_b16 %s, v%d offset:%d" % (vr(f, 2), VADDR + db, stage * 16384 + ks * 4096))
    lg.issue(("v0", idx))
    e("ds_read_b64_tr_b16 %s, v%d offset:%d" % (vr(f + 2, 2), VADDR + db, stage * 16384 + ks * 4096 + 2048))
    lg.issue(("v", idx))

def qk_mfma(idx, sreg):
    b, s = idx >> 3, idx & 7
    f = KF0 + 4 * (idx % NKF)
    d = sreg + 16 * b
    c = "0" if s == 0 else vr(d, 16)
    lg.wait(("k", idx))
    e("v_mfma_f32_32x32x16_bf16 %s, %s, %s, %s" % (vr(d, 16), vr(f, 4), vr(Q0 + 4 * s, 4), c))

def pv_mfma(idx):
    db, ks = idx >> 2, idx & 3
    f = VF0 + 4 * (idx % NVF)
    d = O0 + 16 * db
    lg.wait(("v", idx))
    e("v_mfma_f32_32x32x16_bf16 %s, %s, %s, %s" % (vr(d, 16), vr(f, 4), vr(P0 + 4 * ks, 4), vr(d, 16)))

def softmax_ops(sc):
    ops = []
    a = ops.append
    a("v_max3_f32 v%d, v%d, v%d, v%d" % (V_T0, sc, sc + 1, sc + 2))
    a("v_max3_f32 v%d, v%d, v%d, v%d" % (V_T1, sc + 16, sc + 17, sc + 18))
    for i in range(6):
        a("v_max3_f32 v%d, v%d, v%d, v%d" % (V_T0, V_T0, sc + 3 + 2 * i, sc + 4 + 2 * i))
        a("v_max3_f32 v%d, v%d, v%d, v%d" % (V_T1, V_T1, sc + 19 + 2 * i, sc + 20 + 2 * i))
    a("v_max3_f32 v%d, v%d, v%d, v%d" % (V_T0, V_T0, sc + 15, sc + 31))
    a("v_max_f32 v%d, v%d, v%d" % (V_T0, V_T0, V_T1))
    a("v_mov_b32 v%d, v%d" % (V_T1, V_T0))
    a("s_nop 1")
    a("v_permlane32_swap_b32 v%d, v%d" % (V_T0, V_T1))
    a("v_max3_f32 v%d, v%d, v%d, v%d" % (V_M, V_T0, V_T1, V_M))
    a("v_mul_f32 v%d, s%d, v%d" % (V_T2, S_C, V_M))
    a("v_sub_f32 v%d, v%d, v%d" % (V_AL, V_MC, V_T2))
    a("v_exp_f32 v%d, v%d" % (V_AL, V_AL))
    a("v_mov_b32 v%d, v%d" % (V_MC, V_T2))
    for g in range(8):
        for i in range(4):
            r = sc + 4 * g + i
            a("v_fma_f32 v%d, v%d, s%d, -v%d" % (r, r, S_C, V_MC))
        for i in range(4):
            r = sc + 4 * g + i
            a("v_exp_f32 v%d, v%d" % (r, r))
        if g == 0:
            a("v_mul_f32 v%d, v%d, v%d" % (V_SUM, V_L, V_AL))
        else:
            gg = g - 1
            for i in range(4):
                a("v_add_f32 v%d, v%d, v%d" % (V_SUM, V_SUM, sc + 4 * gg + i))
            a("v_cvt_pk_bf16_f32 v%d, v%d, v%d" % (P0 + 2 * gg, sc + 4 * gg, sc + 4 * gg + 1))
            a("v_cvt_pk_bf16_f32 v%d, v%d, v%d" % (P0 + 2 * gg + 1, sc + 4 * gg + 2, sc + 4 * gg + 3))
        a("v_mul_f32 v%d, v%d, v%d" % (O0 + 2 * g, O0 + 2 * g, V_AL))
        a("v_mul_f32 v%d, v%d, v%d" % (O0 + 2 * g + 1, O0 + 2 * g + 1, V_AL))
    gg = 7
    for i in range(4):
        a("v_add_f32 v%d, v%d, v%d" % (V_SUM, V_SUM, sc + 4 * gg + i))
    a("v_cvt_pk_bf16_f32 v%d, v%d, v%d" % (P0 + 2 * gg, sc + 4 * gg, sc + 4 * gg + 1))
    a("v_cvt_pk_bf16_f32 v%d, v%d, v%d" % (P0 + 2 * gg + 1, sc + 4 * gg + 2, sc + 4 * gg + 3))
    a("v_mov_b32 v%d, v%d" % (V_L, V_SUM))
    return ops

def tile(t, do_qk, do_dk, do_dv, vm):
    e("; ---- tile %d" % t)
    e("s_waitcnt vmcnt(%d)" % vm)
    e("s_barrier")
    if do_dk: dma_k(t % 4)
    if do_dv: dma_v((t + 3) % 4)
    scur = S0[t & 1]; snxt = S0[(t + 1) & 1]
    kst = (t + 1) % 4; vst = t % 4
    ops = softmax_ops(scur)
    n = len(ops)
    if do_qk:
        PRE = 4
        for i in range(PRE): kread(i, kst)
        lead = 16
        for o in ops[:lead]: e(o)
        rest = ops[lead:]
        per = (len(rest) + 15) // 16
        for i in range(16):
            qk_mfma(i, snxt)
            if i + PRE < 16: kread(i + PRE, kst)
            elif i + PRE - 16 < 4: vread(i + PRE - 16, vst)
            for o in rest[i * per:(i + 1) * per]: e(o)
    else:
        for i in range(4): vread(i, vst)
        for o in ops: e(o)
    e("s_nop 1")
    for i in range(16):
        pv_mfma(i)
        if i + 4 < 16: vread(i + 4, vst)
        db = i >> 2
        if db < 3:
            for r in range(4):
                reg = O0 + 16 * (db + 1) + 4 * (i & 3) + r
                e("v_mul_f32 v%d, v%d, v%d" % (reg, reg, V_AL))
            if (i & 3) == 3: e("s_nop 1")

hdr = open("standalone__gqa_softmax__near_ridge.s.ref").read().split("\n")
head = []
for l in hdr:
    if l.startswith("; @launch"):
        head.append("; @launch grid=(256,1,1) block=(512,1,1) lds=131072")
        continue
    head.append(l)
    if l.startswith("standalone__gqa_softmax__near_ridge_kernel:"): break

e("s_cmp_ge_u32 s2, 256")
e("s_cbranch_scc1 L_end")
e("s_load_dwordx8 s[4:11], s[0:1], 0")
e("v_lshrrev_b32 v1, 6, v0")
e("v_and_b32 v15, 63, v0")
e("s_nop 0")
e("v_readfirstlane_b32 s%d, v1" % S_W)
e("v_lshrrev_b32 v6, 4, v15")
e("v_lshl_add_u32 v7, v1, 3, v6")
e("v_and_b32 v8, 15, v15")
e("v_and_b32 v9, 15, v7")
e("v_xor_b32 v9, v8, v9")
e("v_lshlrev_b32 v9, 4, v9")
e("v_lshl_add_u32 v%d, v7, 8, v9" % V_VOK0)
e("v_add_u32 v9, 4, v7")
e("v_and_b32 v9, 15, v9")
e("v_xor_b32 v9, v8, v9")
e("v_lshlrev_b32 v9, 4, v9")
e("v_lshl_add_u32 v%d, v7, 8, v9" % V_VOK1)
e("v_lshlrev_b32 v9, 2, v6")
e("v_xor_b32 v9, v8, v9")
e("v_lshlrev_b32 v9, 4, v9")
e("v_lshl_add_u32 v%d, v7, 8, v9" % V_VOV)
e("v_lshrrev_b32 v6, 5, v15")
e("v_and_b32 v7, 31, v15")
e("v_xor_b32 v8, v8, v6")
for s in range(8):
    e("v_xor_b32 v9, %d, v8" % (2 * s))
    e("v_lshlrev_b32 v9, 4, v9")
    e("v_lshl_add_u32 v%d, v7, 8, v9" % (KADDR + s))
e("v_bfe_u32 v9, v15, 2, 2")
e("v_lshl_add_u32 v8, v6, 2, v9")
e("v_lshlrev_b32 v8, 8, v8")
e("v_bfe_u32 v1, v15, 4, 1")
e("v_lshlrev_b32 v1, 5, v1")
e("v_add_u32 v8, v8, v1")
e("v_and_b32 v1, 3, v15")
e("v_lshlrev_b32 v1, 3, v1")
e("v_add_u32 v8, v8, v1")
e("v_add_u32 v8, %d, v8" % VRING)
for db in range(4):
    e("v_xor_b32 v1, %d, v9" % db)
    e("v_lshl_add_u32 v%d, v1, 6, v8" % (VADDR + db))
e("v_lshrrev_b32 v1, 6, v0")
e("v_lshl_add_u32 v1, v1, 5, v7")
e("v_lshlrev_b32 v1, 8, v1")
e("v_lshl_add_u32 v%d, v6, 4, v1" % V_QOFF)
e("s_waitcnt lgkmcnt(0)")
e("s_mul_i32 s36, s2, 61440")
e("s_lshl_b32 s37, s2, 18")
e("s_add_u32 s%d, s4, s36" % S_Q);  e("s_addc_u32 s%d, s5, 0" % (S_Q + 1))
e("s_mov_b32 s%d, 61440" % (S_Q + 2)); e("s_mov_b32 s%d, 0x00020000" % (S_Q + 3))
e("s_add_u32 s%d, s6, s37" % S_K);  e("s_addc_u32 s%d, s7, 0" % (S_K + 1))
e("s_mov_b32 s%d, 262144" % (S_K + 2)); e("s_mov_b32 s%d, 0x00020000" % (S_K + 3))
e("s_add_u32 s%d, s8, s37" % S_V);  e("s_addc_u32 s%d, s9, 0" % (S_V + 1))
e("s_mov_b32 s%d, 262144" % (S_V + 2)); e("s_mov_b32 s%d, 0x00020000" % (S_V + 3))
e("s_add_u32 s%d, s10, s36" % S_O); e("s_addc_u32 s%d, s11, 0" % (S_O + 1))
e("s_mov_b32 s%d, 61440" % (S_O + 2)); e("s_mov_b32 s%d, 0x00020000" % (S_O + 3))
e("s_lshl_b32 s%d, s%d, 11" % (S_WK, S_W))
e("s_add_u32 s%d, s%d, %d" % (S_WV, S_WK, VRING))
e("s_mov_b32 s%d, 0" % S_KOFF)
e("s_mov_b32 s%d, 0" % S_VOFF)
e("s_mov_b32 s%d, 0x3e0293ee" % S_C)
for s in range(8):
    e("buffer_load_dwordx4 %s, v%d, s[%d:%d], 0 offen offset:%d" % (vr(Q0 + 4 * s, 4), V_QOFF, S_Q, S_Q + 3, 32 * s))
dma_k(0)
dma_k(1); dma_v(0)
dma_k(2); dma_v(1)
dma_k(3); dma_v(2)
e("v_mov_b32 v%d, 0xff800000" % V_M)
e("v_mov_b32 v%d, 0xff800000" % V_MC)
e("v_mov_b32 v%d, 0" % V_L)
for i in range(64): e("v_mov_b32 v%d, 0" % (O0 + i))
e("s_waitcnt vmcnt(12)")
e("s_barrier")
for i in range(4): kread(i, 0)
for i in range(16):
    qk_mfma(i, S0[0])
    if i + 4 < 16: kread(i + 4, 0)
e("s_nop 7"); e("s_nop 7")
e("s_mov_b32 s%d, 0" % S_CNT)
lab("L_loop")
for t in range(4):
    tile(t, True, True, True, 8)
e("s_add_u32 s%d, s%d, 1" % (S_CNT, S_CNT))
e("s_cmp_lt_u32 s%d, 3" % S_CNT)
e("s_cbranch_scc1 L_loop")
tile(12, True, False, True, 8)
tile(13, True, False, False, 6)
tile(14, True, False, False, 2)
tile(15, False, False, False, 0)
e("v_mov_b32 v%d, v%d" % (V_T1, V_L))
e("s_nop 1")
e("v_permlane32_swap_b32 v%d, v%d" % (V_L, V_T1))
e("v_add_f32 v%d, v%d, v%d" % (V_L, V_L, V_T1))
e("v_rcp_f32 v%d, v%d" % (V_L, V_L))
e("s_nop 7"); e("s_nop 3")
for db in range(4):
    for jp in range(2):
        t = S0[0] + 4 * (2 * db + jp)
        for jj in range(2):
            for i in range(4):
                r = O0 + 16 * db + 4 * (2 * jp + jj) + i
                e("v_mul_f32 v%d, v%d, v%d" % (r, r, V_L))
        for jj in range(2):
            r = O0 + 16 * db + 4 * (2 * jp + jj)
            e("v_cvt_pk_bf16_f32 v%d, v%d, v%d" % (t + 2 * jj, r, r + 1))
            e("v_cvt_pk_bf16_f32 v%d, v%d, v%d" % (t + 2 * jj + 1, r + 2, r + 3))
        e("s_nop 1")
        e("v_permlane32_swap_b32 v%d, v%d" % (t, t + 2))
        e("v_permlane32_swap_b32 v%d, v%d" % (t + 1, t + 3))
        e("buffer_store_dwordx4 %s, v%d, s[%d:%d], 0 offen offset:%d" % (vr(t, 4), V_QOFF, S_O, S_O + 3, 64 * db + 32 * jp))
lab("L_end")

tail = """s_endpgm
.section .rodata,"a"
.p2align 6
.amdhsa_kernel standalone__gqa_softmax__near_ridge_kernel
  .amdhsa_next_free_vgpr 256
  .amdhsa_next_free_sgpr 48
  .amdhsa_accum_offset 256
  .amdhsa_group_segment_fixed_size 0
  .amdhsa_kernarg_size 48
  .amdhsa_user_sgpr_count 2
  .amdhsa_user_sgpr_kernarg_segment_ptr 1
  .amdhsa_system_sgpr_workgroup_id_x 1
.end_amdhsa_kernel
"""
path = sys.argv[1] if len(sys.argv) > 1 else "standalone__gqa_softmax__near_ridge.s"
open(path, "w").write("\n".join(head) + "\n" + "\n".join(out) + "\n" + tail)
```

```python
import sys, os
ABL=os.environ.get('ABL','')
NTF=os.environ.get('NTF','1')

NT = 16
KRING = 0
VRING = 65536

out = []
def e(s):
    if ABL=='mem' and (s.startswith('v_mfma') or s.startswith('ds_read') or s.startswith('v_exp') or s.startswith('v_fma') or s.startswith('v_max3') or s.startswith('v_cvt') or (s.startswith('v_mul') ) or s.startswith('v_add_f32')): return
    if ABL.startswith('comp') and s.endswith(' lds'): return
    if ABL=='compnov' and (s.startswith('v_exp') or s.startswith('v_fma') or s.startswith('v_max3') or s.startswith('v_cvt') or (s.startswith('v_mul') ) or s.startswith('v_add_f32')): return
    if ABL=='compmf' and (s.startswith('ds_read') or s.startswith('v_exp') or s.startswith('v_fma') or s.startswith('v_max3') or s.startswith('v_cvt') or (s.startswith('v_mul') ) or s.startswith('v_add_f32')): return
    if ABL=='compnolds' and s.startswith('ds_read'): return
    if ABL=='compnobar' and s.startswith('s_barrier'): return
    if NTF and 'buffer_load' in s:
        s = (s[:-4] + ' nt lds') if s.endswith(' lds') else s + ' nt'
    out.append("    " + s)
def lab(s): out.append(s + ":")

V_TID = 0; V_T0 = 1; V_M = 2; V_L = 3; V_MC = 4; V_AL = 5; V_T1 = 6; V_T2 = 7; V_T3 = 8; V_SUM = 9
V_VOK0 = 10; V_VOK1 = 11; V_VOV = 12; V_QOFF = 13; V_OOFF = 14; V_T4 = 15
KADDR = 16
VADDR = 24
Q0 = 32
O0 = 64
S0 = [128, 160]
P0 = 192
KF0 = 208; NKF = 6
VF0 = 232; NVF = 6
S_Q = 12; S_K = 16; S_V = 20; S_O = 24
S_KOFF = 28; S_VOFF = 29; S_CNT = 30; S_W = 31; S_WK = 32; S_WV = 33; S_C = 34; S_THR = 35

def vr(a, n): return "v[%d:%d]" % (a, a + n - 1)

class LG:
    def __init__(s): s.q = []
    def issue(s, tag): s.q.append(tag)
    def wait(s, tag):
        if tag in s.q:
            i = s.q.index(tag)
            n = len(s.q) - 1 - i
            e("s_waitcnt lgkmcnt(%d)" % n)
            s.q = s.q[i + 1:]
lg = LG()

def dma_k(stage):
    e("s_add_u32 m0, s%d, %d" % (S_WK, stage * 16384))
    e("s_nop 0")
    e("buffer_load_dwordx4 v%d, s[%d:%d], s%d offen lds" % (V_VOK0, S_K, S_K + 3, S_KOFF))
    e("buffer_load_dwordx4 v%d, s[%d:%d], s%d offen offset:1024 lds" % (V_VOK1, S_K, S_K + 3, S_KOFF))
    e("s_add_u32 s%d, s%d, 16384" % (S_KOFF, S_KOFF))

def dma_v(stage):
    e("s_add_u32 m0, s%d, %d" % (S_WV, stage * 16384))
    e("s_nop 0")
    e("buffer_load_dwordx4 v%d, s[%d:%d], s%d offen lds" % (V_VOV, S_V, S_V + 3, S_VOFF))
    e("buffer_load_dwordx4 v%d, s[%d:%d], s%d offen offset:1024 lds" % (V_VOV, S_V, S_V + 3, S_VOFF))
    e("s_add_u32 s%d, s%d, 16384" % (S_VOFF, S_VOFF))

def kread(idx, stage):
    b, s = idx >> 3, idx & 7
    f = KF0 + 4 * (idx % NKF)
    e("ds_read_b128 %s, v%d offset:%d" % (vr(f, 4), KADDR + s, stage * 16384 + b * 8192))
    lg.issue(("k", idx))

def vread(idx, stage):
    ks, db = idx >> 2, idx & 3
    f = VF0 + 4 * (idx % NVF)
    e("ds_read_b64_tr_b16 %s, v%d offset:%d" % (vr(f, 2), VADDR + db, stage * 16384 + ks * 4096))
    lg.issue(("v0", idx))
    e("ds_read_b64_tr_b16 %s, v%d offset:%d" % (vr(f + 2, 2), VADDR + db, stage * 16384 + ks * 4096 + 2048))
    lg.issue(("v", idx))

def qk_mfma(idx, sreg):
    b, s = idx >> 3, idx & 7
    f = KF0 + 4 * (idx % NKF)
    d = sreg + 16 * b
    c = "0" if s == 0 else vr(d, 16)
    lg.wait(("k", idx))
    e("v_mfma_f32_32x32x16_bf16 %s, %s, %s, %s" % (vr(d, 16), vr(f, 4), vr(Q0 + 4 * s, 4), c))

def pv_mfma(idx):
    ks, db = idx >> 2, idx & 3
    f = VF0 + 4 * (idx % NVF)
    d = O0 + 16 * db
    lg.wait(("v", idx))
    e("v_mfma_f32_32x32x16_bf16 %s, %s, %s, %s" % (vr(d, 16), vr(f, 4), vr(P0 + 4 * ks, 4), vr(d, 16)))

rare = []
def smax_lead(sc, t):
    a = e
    a("v_max3_f32 v%d, v%d, v%d, v%d" % (V_T0, sc, sc + 1, sc + 2))
    a("v_max3_f32 v%d, v%d, v%d, v%d" % (V_T1, sc + 16, sc + 17, sc + 18))
    for i in range(6):
        a("v_max3_f32 v%d, v%d, v%d, v%d" % (V_T0, V_T0, sc + 3 + 2 * i, sc + 4 + 2 * i))
        a("v_max3_f32 v%d, v%d, v%d, v%d" % (V_T1, V_T1, sc + 19 + 2 * i, sc + 20 + 2 * i))
    a("v_max3_f32 v%d, v%d, v%d, v%d" % (V_T0, V_T0, sc + 15, sc + 31))
    a("v_max_f32 v%d, v%d, v%d" % (V_T0, V_T0, V_T1))
    a("v_mov_b32 v%d, v%d" % (V_T1, V_T0))
    a("s_nop 1")
    a("v_permlane32_swap_b32 v%d, v%d" % (V_T0, V_T1))
    a("v_max_f32 v%d, v%d, v%d" % (V_T0, V_T0, V_T1))
    a("v_fma_f32 v%d, v%d, s%d, -v%d" % (V_T1, V_T0, S_C, V_MC))
    a("v_cmp_lt_f32 vcc, s%d, v%d" % (S_THR, V_T1))
    a("s_nop 4")
    a("s_cbranch_vccnz L_rare%d" % t)
    lab("L_back%d" % t)
    r = rare.append
    r("L_rare%d:" % t)
    r("    s_nop 7"); r("    s_nop 7")
    r("    v_max_f32 v%d, v%d, v%d" % (V_M, V_M, V_T0))
    r("    v_mul_f32 v%d, s%d, v%d" % (V_T2, S_C, V_M))
    r("    v_sub_f32 v%d, v%d, v%d" % (V_AL, V_MC, V_T2))
    r("    v_exp_f32 v%d, v%d" % (V_AL, V_AL))
    r("    v_mov_b32 v%d, v%d" % (V_MC, V_T2))
    r("    s_nop 0")
    r("    v_mul_f32 v%d, v%d, v%d" % (V_L, V_L, V_AL))
    for i in range(64):
        r("    v_mul_f32 v%d, v%d, v%d" % (O0 + i, O0 + i, V_AL))
    r("    s_branch L_back%d" % t)

def smax_groups(sc, g0, g1):
    ops = []; a = ops.append
    for g in range(g0, g1 + 1):
        if g < g1:
            for i in range(4):
                r = sc + 4 * g + i
                a("v_fma_f32 v%d, v%d, s%d, -v%d" % (r, r, S_C, V_MC))
            for i in range(4):
                r = sc + 4 * g + i
                a("v_exp_f32 v%d, v%d" % (r, r))
        if g > g0:
            gg = g - 1
            if g == g1: a("s_nop 0")
            for i in range(4):
                a("v_add_f32 v%d, v%d, v%d" % (V_L, V_L, sc + 4 * gg + i))
            a("v_cvt_pk_bf16_f32 v%d, v%d, v%d" % (P0 + 2 * gg, sc + 4 * gg, sc + 4 * gg + 1))
            a("v_cvt_pk_bf16_f32 v%d, v%d, v%d" % (P0 + 2 * gg + 1, sc + 4 * gg + 2, sc + 4 * gg + 3))
    return ops

def tile(t, do_qk, do_dk, do_dv, vm):
    e("; ---- tile %d" % t)
    e("s_waitcnt vmcnt(%d)" % vm)
    e("s_barrier")
    if do_dk: dma_k(t % 4)
    if do_dv: dma_v((t + 3) % 4)
    scur = S0[t & 1]; snxt = S0[(t + 1) & 1]
    kst = (t + 1) % 4; vst = t % 4
    PRE = 4
    if do_qk:
        for i in range(PRE): kread(i, kst)
    else:
        for i in range(4): vread(i, vst)
    smax_lead(scur, t)
    opsA = smax_groups(scur, 0, 4)
    opsB = smax_groups(scur, 4, 8)
    if do_qk:
        per = (len(opsA) + 13) // 14
        for i in range(16):
            qk_mfma(i, snxt)
            if i + PRE < 16: kread(i + PRE, kst)
            elif i + PRE - 16 < 4: vread(i + PRE - 16, vst)
            for o in opsA[i * per:(i + 1) * per]: e(o)
    else:
        for o in opsA: e(o)
        e("s_nop 1")
    per = (len(opsB) + 6) // 7
    for i in range(16):
        pv_mfma(i)
        if i + 4 < 16: vread(i + 4, vst)
        for o in opsB[i * per:(i + 1) * per]: e(o)
        if i == 7: e("s_nop 1")

hdr = open("standalone__gqa_softmax__near_ridge.s.ref").read().split("\n")
head = []
for l in hdr:
    if l.startswith("; @launch"):
        head.append("; @launch grid=(256,1,1) block=(512,1,1) lds=131072")
        continue
    head.append(l)
    if l.startswith("standalone__gqa_softmax__near_ridge_kernel:"): break

e("s_cmp_ge_u32 s2, %d" % (0 if ABL=="empty" else 256))
e("s_cbranch_scc1 L_end")
e("s_load_dwordx8 s[4:11], s[0:1], 0")
e("v_lshrrev_b32 v1, 6, v0")
e("v_and_b32 v15, 63, v0")
e("s_nop 0")
e("v_readfirstlane_b32 s%d, v1" % S_W)
e("v_lshrrev_b32 v6, 4, v15")
e("v_lshl_add_u32 v7, v1, 3, v6")
e("v_and_b32 v8, 15, v15")
e("v_and_b32 v9, 15, v7")
e("v_xor_b32 v9, v8, v9")
e("v_lshlrev_b32 v9, 4, v9")
e("v_lshl_add_u32 v%d, v7, 8, v9" % V_VOK0)
e("v_add_u32 v9, 4, v7")
e("v_and_b32 v9, 15, v9")
e("v_xor_b32 v9, v8, v9")
e("v_lshlrev_b32 v9, 4, v9")
e("v_lshl_add_u32 v%d, v7, 8, v9" % V_VOK1)
e("v_lshlrev_b32 v9, 2, v6")
e("v_xor_b32 v9, v8, v9")
e("v_lshlrev_b32 v9, 4, v9")
e("v_lshl_add_u32 v%d, v7, 8, v9" % V_VOV)
e("v_lshrrev_b32 v6, 5, v15")
e("v_and_b32 v7, 31, v15")
e("v_xor_b32 v8, v8, v6")
for s in range(8):
    e("v_xor_b32 v9, %d, v8" % (2 * s))
    e("v_lshlrev_b32 v9, 4, v9")
    e("v_lshl_add_u32 v%d, v7, 8, v9" % (KADDR + s))
e("v_bfe_u32 v9, v15, 2, 2")
e("v_lshl_add_u32 v8, v6, 2, v9")
e("v_lshlrev_b32 v8, 8, v8")
e("v_bfe_u32 v1, v15, 4, 1")
e("v_lshlrev_b32 v1, 5, v1")
e("v_add_u32 v8, v8, v1")
e("v_and_b32 v1, 3, v15")
e("v_lshlrev_b32 v1, 3, v1")
e("v_add_u32 v8, v8, v1")
e("v_add_u32 v8, %d, v8" % VRING)
for db in range(4):
    e("v_xor_b32 v1, %d, v9" % db)
    e("v_lshl_add_u32 v%d, v1, 6, v8" % (VADDR + db))
e("v_lshrrev_b32 v1, 6, v0")
e("v_lshl_add_u32 v1, v1, 5, v7")
e("v_lshlrev_b32 v1, 8, v1")
e("v_lshl_add_u32 v%d, v6, 4, v1" % V_QOFF)
e("s_waitcnt lgkmcnt(0)")
e("s_mul_i32 s36, s2, 61440")
e("s_lshl_b32 s37, s2, 18")
e("s_add_u32 s%d, s4, s36" % S_Q);  e("s_addc_u32 s%d, s5, 0" % (S_Q + 1))
e("s_mov_b32 s%d, 61440" % (S_Q + 2)); e("s_mov_b32 s%d, 0x00020000" % (S_Q + 3))
e("s_add_u32 s%d, s6, s37" % S_K);  e("s_addc_u32 s%d, s7, 0" % (S_K + 1))
e("s_mov_b32 s%d, 262144" % (S_K + 2)); e("s_mov_b32 s%d, 0x00020000" % (S_K + 3))
e("s_add_u32 s%d, s8, s37" % S_V);  e("s_addc_u32 s%d, s9, 0" % (S_V + 1))
e("s_mov_b32 s%d, 262144" % (S_V + 2)); e("s_mov_b32 s%d, 0x00020000" % (S_V + 3))
e("s_add_u32 s%d, s10, s36" % S_O); e("s_addc_u32 s%d, s11, 0" % (S_O + 1))
e("s_mov_b32 s%d, 61440" % (S_O + 2)); e("s_mov_b32 s%d, 0x00020000" % (S_O + 3))
e("s_lshl_b32 s%d, s%d, 11" % (S_WK, S_W))
e("s_add_u32 s%d, s%d, %d" % (S_WV, S_WK, VRING))
e("s_mov_b32 s%d, 0" % S_KOFF)
e("s_mov_b32 s%d, 0" % S_VOFF)
e("s_mov_b32 s%d, 0x41000000" % S_THR)
e("s_mov_b32 s%d, 0x3e0293ee" % S_C)
for s in range(8):
    e("buffer_load_dwordx4 %s, v%d, s[%d:%d], 0 offen offset:%d" % (vr(Q0 + 4 * s, 4), V_QOFF, S_Q, S_Q + 3, 32 * s))
dma_k(0)
dma_k(1); dma_v(0)
dma_k(2); dma_v(1)
dma_k(3); dma_v(2)
e("v_mov_b32 v%d, 0xff800000" % V_M)
e("v_mov_b32 v%d, 0xff800000" % V_MC)
e("v_mov_b32 v%d, 0" % V_L)
for i in range(64): e("v_mov_b32 v%d, 0" % (O0 + i))
e("s_waitcnt vmcnt(12)")
e("s_barrier")
for i in range(4): kread(i, 0)
for i in range(16):
    qk_mfma(i, S0[0])
    if i + 4 < 16: kread(i + 4, 0)
e("s_nop 7"); e("s_nop 7")
e("s_mov_b32 s%d, 0" % S_CNT)
lab("L_loop")
for t in range(4):
    tile(t, True, True, True, 8)
e("s_add_u32 s%d, s%d, 1" % (S_CNT, S_CNT))
e("s_cmp_lt_u32 s%d, 3" % S_CNT)
e("s_cbranch_scc1 L_loop")
tile(12, True, False, True, 8)
tile(13, True, False, False, 6)
tile(14, True, False, False, 2)
tile(15, False, False, False, 0)
e("v_mov_b32 v%d, v%d" % (V_T1, V_L))
e("s_nop 1")
e("v_permlane32_swap_b32 v%d, v%d" % (V_L, V_T1))
e("v_add_f32 v%d, v%d, v%d" % (V_L, V_L, V_T1))
e("v_rcp_f32 v%d, v%d" % (V_L, V_L))
e("s_nop 7"); e("s_nop 3")
for db in range(4):
    for jp in range(2):
        t = S0[0] + 4 * (2 * db + jp)
        for jj in range(2):
            for i in range(4):
                r = O0 + 16 * db + 4 * (2 * jp + jj) + i
                e("v_mul_f32 v%d, v%d, v%d" % (r, r, V_L))
        for jj in range(2):
            r = O0 + 16 * db + 4 * (2 * jp + jj)
            e("v_cvt_pk_bf16_f32 v%d, v%d, v%d" % (t + 2 * jj, r, r + 1))
            e("v_cvt_pk_bf16_f32 v%d, v%d, v%d" % (t + 2 * jj + 1, r + 2, r + 3))
        e("s_nop 1")
        e("v_permlane32_swap_b32 v%d, v%d" % (t, t + 2))
        e("v_permlane32_swap_b32 v%d, v%d" % (t + 1, t + 3))
        e("buffer_store_dwordx4 %s, v%d, s[%d:%d], 0 offen offset:%d" % (vr(t, 4), V_QOFF, S_O, S_O + 3, 64 * db + 32 * jp))
lab("L_end")
e("s_endpgm")
out.extend(rare)

tail = """.section .rodata,"a"
.p2align 6
.amdhsa_kernel standalone__gqa_softmax__near_ridge_kernel
  .amdhsa_next_free_vgpr 256
  .amdhsa_next_free_sgpr 48
  .amdhsa_accum_offset 256
  .amdhsa_group_segment_fixed_size 0
  .amdhsa_kernarg_size 48
  .amdhsa_user_sgpr_count 2
  .amdhsa_user_sgpr_kernarg_segment_ptr 1
  .amdhsa_system_sgpr_workgroup_id_x 1
.end_amdhsa_kernel
"""
path = sys.argv[1] if len(sys.argv) > 1 else "standalone__gqa_softmax__near_ridge.s"
open(path, "w").write("\n".join(head) + "\n" + "\n".join(out) + "\n" + tail)
```

```python
import sys, os
ABL=os.environ.get('ABL','')
NTF=os.environ.get('NTF','1')

PRIO=os.environ.get('PRIO','')
NT = 16
KRING = 0
VRING = 65536

out = []
def e(s):
    if ABL=='mem' and (s.startswith('v_mfma') or s.startswith('ds_read') or s.startswith('v_exp') or s.startswith('v_fma') or s.startswith('v_max3') or s.startswith('v_cvt') or (s.startswith('v_mul') ) or s.startswith('v_add_f32')): return
    if ABL.startswith('comp') and s.endswith(' lds'): return
    if ABL=='compnov' and (s.startswith('v_exp') or s.startswith('v_fma') or s.startswith('v_max3') or s.startswith('v_cvt') or (s.startswith('v_mul') ) or s.startswith('v_add_f32')): return
    if ABL=='compmf' and (s.startswith('ds_read') or s.startswith('v_exp') or s.startswith('v_fma') or s.startswith('v_max3') or s.startswith('v_cvt') or (s.startswith('v_mul') ) or s.startswith('v_add_f32')): return
    if ABL=='compnolds' and s.startswith('ds_read'): return
    if ABL=='compnobar' and s.startswith('s_barrier'): return
    if NTF and 'buffer_load' in s:
        fl = os.environ.get('FL',' nt')
        s = (s[:-4] + fl + ' lds') if s.endswith(' lds') else s + fl
    if os.environ.get('ST') and 'buffer_store' in s: s = s + os.environ.get('ST')
    out.append("    " + s)
def lab(s): out.append(s + ":")

V_TID = 0; V_T0 = 1; V_M = 2; V_L = 3; V_MC = 4; V_AL = 5; V_T1 = 6; V_T2 = 7; V_T3 = 8; V_SUM = 9
V_VOK0 = 10; V_VOK1 = 11; V_VOV = 12; V_QOFF = 13; V_OOFF = 14; V_T4 = 15
KADDR = 16
VADDR = 24
Q0 = 32
O0 = 64
S0 = [128, 160]
P0 = 192
KF0 = 208; NKF = 6
VF0 = 232; NVF = 6
S_Q = 12; S_K = 16; S_V = 20; S_O = 24
S_KOFF = 28; S_VOFF = 29; S_CNT = 30; S_W = 31; S_WK = 32; S_WV = 33; S_C = 34; S_THR = 35

def vr(a, n): return "v[%d:%d]" % (a, a + n - 1)

class LG:
    def __init__(s): s.q = []
    def issue(s, tag): s.q.append(tag)
    def wait(s, tag):
        if tag in s.q:
            i = s.q.index(tag)
            n = len(s.q) - 1 - i
            e("s_waitcnt lgkmcnt(%d)" % n)
            s.q = s.q[i + 1:]
lg = LG()

def dma_k(stage):
    e("s_add_u32 m0, s%d, %d" % (S_WK, stage * 16384))
    e("s_nop 0")
    e("buffer_load_dwordx4 v%d, s[%d:%d], s%d offen lds" % (V_VOK0, S_K, S_K + 3, S_KOFF))
    e("buffer_load_dwordx4 v%d, s[%d:%d], s%d offen offset:1024 lds" % (V_VOK1, S_K, S_K + 3, S_KOFF))
    e("s_add_u32 s%d, s%d, 16384" % (S_KOFF, S_KOFF))

def dma_v(stage):
    e("s_add_u32 m0, s%d, %d" % (S_WV, stage * 16384))
    e("s_nop 0")
    e("buffer_load_dwordx4 v%d, s[%d:%d], s%d offen lds" % (V_VOV, S_V, S_V + 3, S_VOFF))
    e("buffer_load_dwordx4 v%d, s[%d:%d], s%d offen offset:1024 lds" % (V_VOV, S_V, S_V + 3, S_VOFF))
    e("s_add_u32 s%d, s%d, 16384" % (S_VOFF, S_VOFF))

def kread(idx, stage):
    b, s = idx >> 3, idx & 7
    f = KF0 + 4 * (idx % NKF)
    e("ds_read_b128 %s, v%d offset:%d" % (vr(f, 4), KADDR + s, stage * 16384 + b * 8192))
    lg.issue(("k", idx))

def vread(idx, stage):
    ks, db = idx >> 2, idx & 3
    f = VF0 + 4 * (idx % NVF)
    e("ds_read_b64_tr_b16 %s, v%d offset:%d" % (vr(f, 2), VADDR + db, stage * 16384 + ks * 4096))
    lg.issue(("v0", idx))
    e("ds_read_b64_tr_b16 %s, v%d offset:%d" % (vr(f + 2, 2), VADDR + db, stage * 16384 + ks * 4096 + 2048))
    lg.issue(("v", idx))

def qk_mfma(idx, sreg):
    b, s = idx >> 3, idx & 7
    f = KF0 + 4 * (idx % NKF)
    d = sreg + 16 * b
    c = "0" if s == 0 else vr(d, 16)
    lg.wait(("k", idx))
    e("v_mfma_f32_32x32x16_bf16 %s, %s, %s, %s" % (vr(d, 16), vr(f, 4), vr(Q0 + 4 * s, 4), c))

def pv_mfma(idx):
    ks, db = idx >> 2, idx & 3
    f = VF0 + 4 * (idx % NVF)
    d = O0 + 16 * db
    lg.wait(("v", idx))
    e("v_mfma_f32_32x32x16_bf16 %s, %s, %s, %s" % (vr(d, 16), vr(f, 4), vr(P0 + 4 * ks, 4), vr(d, 16)))

rare = []
def smax_lead(sc, t):
    a = e
    a("v_max3_f32 v%d, v%d, v%d, v%d" % (V_T0, sc, sc + 1, sc + 2))
    a("v_max3_f32 v%d, v%d, v%d, v%d" % (V_T1, sc + 16, sc + 17, sc + 18))
    for i in range(6):
        a("v_max3_f32 v%d, v%d, v%d, v%d" % (V_T0, V_T0, sc + 3 + 2 * i, sc + 4 + 2 * i))
        a("v_max3_f32 v%d, v%d, v%d, v%d" % (V_T1, V_T1, sc + 19 + 2 * i, sc + 20 + 2 * i))
    a("v_max3_f32 v%d, v%d, v%d, v%d" % (V_T0, V_T0, sc + 15, sc + 31))
    a("v_max_f32 v%d, v%d, v%d" % (V_T0, V_T0, V_T1))
    a("v_mov_b32 v%d, v%d" % (V_T1, V_T0))
    a("s_nop 1")
    a("v_permlane32_swap_b32 v%d, v%d" % (V_T0, V_T1))
    a("v_max_f32 v%d, v%d, v%d" % (V_T0, V_T0, V_T1))
    a("v_fma_f32 v%d, v%d, s%d, -v%d" % (V_T1, V_T0, S_C, V_MC))
    a("v_cmp_lt_f32 vcc, s%d, v%d" % (S_THR, V_T1))
    a("s_nop 4")
    a("s_cbranch_vccnz L_rare%d" % t)
    lab("L_back%d" % t)
    r = rare.append
    r("L_rare%d:" % t)
    r("    s_nop 7"); r("    s_nop 7")
    r("    v_max_f32 v%d, v%d, v%d" % (V_M, V_M, V_T0))
    r("    v_mul_f32 v%d, s%d, v%d" % (V_T2, S_C, V_M))
    r("    v_sub_f32 v%d, v%d, v%d" % (V_AL, V_MC, V_T2))
    r("    v_exp_f32 v%d, v%d" % (V_AL, V_AL))
    r("    v_mov_b32 v%d, v%d" % (V_MC, V_T2))
    r("    s_nop 0")
    r("    v_mul_f32 v%d, v%d, v%d" % (V_L, V_L, V_AL))
    for i in range(64):
        r("    v_mul_f32 v%d, v%d, v%d" % (O0 + i, O0 + i, V_AL))
    r("    s_branch L_back%d" % t)

def smax_groups(sc, g0, g1):
    ops = []; a = ops.append
    for g in range(g0, g1 + 1):
        if g < g1:
            for i in range(4):
                r = sc + 4 * g + i
                a("v_fma_f32 v%d, v%d, s%d, -v%d" % (r, r, S_C, V_MC))
            for i in range(4):
                r = sc + 4 * g + i
                a("v_exp_f32 v%d, v%d" % (r, r))
        if g > g0:
            gg = g - 1
            if g == g1: a("s_nop 0")
            for i in range(4):
                a("v_add_f32 v%d, v%d, v%d" % (V_L, V_L, sc + 4 * gg + i))
            a("v_cvt_pk_bf16_f32 v%d, v%d, v%d" % (P0 + 2 * gg, sc + 4 * gg, sc + 4 * gg + 1))
            a("v_cvt_pk_bf16_f32 v%d, v%d, v%d" % (P0 + 2 * gg + 1, sc + 4 * gg + 2, sc + 4 * gg + 3))
    return ops

def tile(t, do_qk, do_dk, do_dv, vm):
    e("; ---- tile %d" % t)
    e("s_waitcnt vmcnt(%d)" % vm)
    e("s_barrier")
    if do_dk: dma_k(t % 4)
    if do_dv: dma_v((t + 3) % 4)
    scur = S0[t & 1]; snxt = S0[(t + 1) & 1]
    kst = (t + 1) % 4; vst = t % 4
    PRE = 4
    if do_qk:
        for i in range(PRE): kread(i, kst)
    else:
        for i in range(4): vread(i, vst)
    smax_lead(scur, t)
    opsA = smax_groups(scur, 0, 4)
    opsB = smax_groups(scur, 4, 8)
    if do_qk:
        per = (len(opsA) + 13) // 14
        for i in range(16):
            qk_mfma(i, snxt)
            if i + PRE < 16: kread(i + PRE, kst)
            elif i + PRE - 16 < 4: vread(i + PRE - 16, vst)
            for o in opsA[i * per:(i + 1) * per]: e(o)
    else:
        for o in opsA: e(o)
        e("s_nop 1")
    if PRIO=='b': e("s_setprio 1")
    per = (len(opsB) + 6) // 7
    for i in range(16):
        pv_mfma(i)
        if i + 4 < 16: vread(i + 4, vst)
        for o in opsB[i * per:(i + 1) * per]: e(o)
        if i == 7: e("s_nop 1")
    if PRIO=='b': e("s_setprio 0")

hdr = open("standalone__gqa_softmax__near_ridge.s.ref").read().split("\n")
head = []
for l in hdr:
    if l.startswith("; @launch"):
        head.append("; @launch grid=(256,1,1) block=(512,1,1) lds=131072")
        continue
    head.append(l)
    if l.startswith("standalone__gqa_softmax__near_ridge_kernel:"): break

e("s_cmp_ge_u32 s2, %d" % (0 if ABL=="empty" else 256))
e("s_cbranch_scc1 L_end")
e("s_load_dwordx8 s[4:11], s[0:1], 0")
e("v_lshrrev_b32 v1, 6, v0")
e("v_and_b32 v15, 63, v0")
e("s_nop 0")
e("v_readfirstlane_b32 s%d, v1" % S_W)
e("v_lshrrev_b32 v6, 4, v15")
e("v_lshl_add_u32 v7, v1, 3, v6")
e("v_and_b32 v8, 15, v15")
e("v_and_b32 v9, 15, v7")
e("v_xor_b32 v9, v8, v9")
e("v_lshlrev_b32 v9, 4, v9")
e("v_lshl_add_u32 v%d, v7, 8, v9" % V_VOK0)
e("v_add_u32 v9, 4, v7")
e("v_and_b32 v9, 15, v9")
e("v_xor_b32 v9, v8, v9")
e("v_lshlrev_b32 v9, 4, v9")
e("v_lshl_add_u32 v%d, v7, 8, v9" % V_VOK1)
e("v_lshlrev_b32 v9, 2, v6")
e("v_xor_b32 v9, v8, v9")
e("v_lshlrev_b32 v9, 4, v9")
e("v_lshl_add_u32 v%d, v7, 8, v9" % V_VOV)
e("v_lshrrev_b32 v6, 5, v15")
e("v_and_b32 v7, 31, v15")
e("v_xor_b32 v8, v8, v6")
for s in range(8):
    e("v_xor_b32 v9, %d, v8" % (2 * s))
    e("v_lshlrev_b32 v9, 4, v9")
    e("v_lshl_add_u32 v%d, v7, 8, v9" % (KADDR + s))
e("v_bfe_u32 v9, v15, 2, 2")
e("v_lshl_add_u32 v8, v6, 2, v9")
e("v_lshlrev_b32 v8, 8, v8")
e("v_bfe_u32 v1, v15, 4, 1")
e("v_lshlrev_b32 v1, 5, v1")
e("v_add_u32 v8, v8, v1")
e("v_and_b32 v1, 3, v15")
e("v_lshlrev_b32 v1, 3, v1")
e("v_add_u32 v8, v8, v1")
e("v_add_u32 v8, %d, v8" % VRING)
for db in range(4):
    e("v_xor_b32 v1, %d, v9" % db)
    e("v_lshl_add_u32 v%d, v1, 6, v8" % (VADDR + db))
e("v_lshrrev_b32 v1, 6, v0")
e("v_lshl_add_u32 v1, v1, 5, v7")
e("v_lshlrev_b32 v1, 8, v1")
e("v_lshl_add_u32 v%d, v6, 4, v1" % V_QOFF)
e("s_waitcnt lgkmcnt(0)")
e("s_mul_i32 s36, s2, 61440")
e("s_lshl_b32 s37, s2, 18")
e("s_add_u32 s%d, s4, s36" % S_Q);  e("s_addc_u32 s%d, s5, 0" % (S_Q + 1))
e("s_mov_b32 s%d, 61440" % (S_Q + 2)); e("s_mov_b32 s%d, 0x00020000" % (S_Q + 3))
e("s_add_u32 s%d, s6, s37" % S_K);  e("s_addc_u32 s%d, s7, 0" % (S_K + 1))
e("s_mov_b32 s%d, 262144" % (S_K + 2)); e("s_mov_b32 s%d, 0x00020000" % (S_K + 3))
e("s_add_u32 s%d, s8, s37" % S_V);  e("s_addc_u32 s%d, s9, 0" % (S_V + 1))
e("s_mov_b32 s%d, 262144" % (S_V + 2)); e("s_mov_b32 s%d, 0x00020000" % (S_V + 3))
e("s_add_u32 s%d, s10, s36" % S_O); e("s_addc_u32 s%d, s11, 0" % (S_O + 1))
e("s_mov_b32 s%d, 61440" % (S_O + 2)); e("s_mov_b32 s%d, 0x00020000" % (S_O + 3))
e("s_lshl_b32 s%d, s%d, 11" % (S_WK, S_W))
e("s_add_u32 s%d, s%d, %d" % (S_WV, S_WK, VRING))
e("s_mov_b32 s%d, 0" % S_KOFF)
e("s_mov_b32 s%d, 0" % S_VOFF)
e("s_mov_b32 s%d, 0x41000000" % S_THR)
e("s_mov_b32 s%d, 0x3e0293ee" % S_C)
for s in range(8):
    e("buffer_load_dwordx4 %s, v%d, s[%d:%d], 0 offen offset:%d" % (vr(Q0 + 4 * s, 4), V_QOFF, S_Q, S_Q + 3, 32 * s))
dma_k(0)
dma_k(1); dma_v(0)
dma_k(2); dma_v(1)
dma_k(3); dma_v(2)
e("v_mov_b32 v%d, 0xff800000" % V_M)
e("v_mov_b32 v%d, 0xff800000" % V_MC)
e("v_mov_b32 v%d, 0" % V_L)
for i in range(64): e("v_mov_b32 v%d, 0" % (O0 + i))
e("s_waitcnt vmcnt(12)")
e("s_barrier")
for i in range(4): kread(i, 0)
for i in range(16):
    qk_mfma(i, S0[0])
    if i + 4 < 16: kread(i + 4, 0)
e("s_nop 7"); e("s_nop 7")
if PRIO=='a':
    e("s_cmp_ge_u32 s%d, 4" % S_W); e("s_cbranch_scc0 L_np"); e("s_setprio 1"); lab("L_np")
e("s_mov_b32 s%d, 0" % S_CNT)
lab("L_loop")
for t in range(4):
    tile(t, True, True, True, 8)
e("s_add_u32 s%d, s%d, 1" % (S_CNT, S_CNT))
e("s_cmp_lt_u32 s%d, 3" % S_CNT)
e("s_cbranch_scc1 L_loop")
tile(12, True, False, True, 8)
tile(13, True, False, False, 6)
tile(14, True, False, False, 2)
tile(15, False, False, False, 0)
e("v_mov_b32 v%d, v%d" % (V_T1, V_L))
e("s_nop 1")
e("v_permlane32_swap_b32 v%d, v%d" % (V_L, V_T1))
e("v_add_f32 v%d, v%d, v%d" % (V_L, V_L, V_T1))
e("v_rcp_f32 v%d, v%d" % (V_L, V_L))
e("s_nop 7"); e("s_nop 3")
for db in range(4):
    for jp in range(2):
        t = S0[0] + 4 * (2 * db + jp)
        for jj in range(2):
            for i in range(4):
                r = O0 + 16 * db + 4 * (2 * jp + jj) + i
                e("v_mul_f32 v%d, v%d, v%d" % (r, r, V_L))
        for jj in range(2):
            r = O0 + 16 * db + 4 * (2 * jp + jj)
            e("v_cvt_pk_bf16_f32 v%d, v%d, v%d" % (t + 2 * jj, r, r + 1))
            e("v_cvt_pk_bf16_f32 v%d, v%d, v%d" % (t + 2 * jj + 1, r + 2, r + 3))
        e("s_nop 1")
        e("v_permlane32_swap_b32 v%d, v%d" % (t, t + 2))
        e("v_permlane32_swap_b32 v%d, v%d" % (t + 1, t + 3))
        e("buffer_store_dwordx4 %s, v%d, s[%d:%d], 0 offen offset:%d" % (vr(t, 4), V_QOFF, S_O, S_O + 3, 64 * db + 32 * jp))
lab("L_end")
e("s_endpgm")
out.extend(rare)

tail = """.section .rodata,"a"
.p2align 6
.amdhsa_kernel standalone__gqa_softmax__near_ridge_kernel
  .amdhsa_next_free_vgpr 256
  .amdhsa_next_free_sgpr 48
  .amdhsa_accum_offset 256
  .amdhsa_group_segment_fixed_size 0
  .amdhsa_kernarg_size 48
  .amdhsa_user_sgpr_count 2
  .amdhsa_user_sgpr_kernarg_segment_ptr 1
  .amdhsa_system_sgpr_workgroup_id_x 1
.end_amdhsa_kernel
"""
path = sys.argv[1] if len(sys.argv) > 1 else "standalone__gqa_softmax__near_ridge.s"
open(path, "w").write("\n".join(head) + "\n" + "\n".join(out) + "\n" + tail)
```

```python
import sys, os
ABL=os.environ.get('ABL','')
NTF=os.environ.get('NTF','1')

PRIO=os.environ.get('PRIO','')
NT = 16
KRING = 0
VRING = 65536

out = []
def e(s):
    if ABL=='mem' and (s.startswith('v_mfma') or s.startswith('ds_read') or s.startswith('v_exp') or s.startswith('v_fma') or s.startswith('v_max3') or s.startswith('v_cvt') or (s.startswith('v_mul') ) or s.startswith('v_add_f32')): return
    if ABL.startswith('comp') and s.endswith(' lds'): return
    if ABL=='compnov' and (s.startswith('v_exp') or s.startswith('v_fma') or s.startswith('v_max3') or s.startswith('v_cvt') or (s.startswith('v_mul') ) or s.startswith('v_add_f32')): return
    if ABL=='compmf' and (s.startswith('ds_read') or s.startswith('v_exp') or s.startswith('v_fma') or s.startswith('v_max3') or s.startswith('v_cvt') or (s.startswith('v_mul') ) or s.startswith('v_add_f32')): return
    if ABL=='compnolds' and s.startswith('ds_read'): return
    if ABL=='compnobar' and s.startswith('s_barrier'): return
    if NTF and 'buffer_load' in s:
        fl = os.environ.get('FL',' nt')
        s = (s[:-4] + fl + ' lds') if s.endswith(' lds') else s + fl
    if os.environ.get('ST') and 'buffer_store' in s: s = s + os.environ.get('ST')
    out.append("    " + s)
def lab(s): out.append(s + ":")

V_TID = 0; V_T0 = 1; V_M = 2; V_L = 3; V_MC = 4; V_AL = 5; V_T1 = 6; V_T2 = 7; V_T3 = 8; V_SUM = 9
V_VOK0 = 10; V_VOK1 = 11; V_VOV = 12; V_QOFF = 13; V_OOFF = 14; V_T4 = 15
KADDR = 16
VADDR = 24
Q0 = 32
O0 = 64
S0 = [128, 160]
P0 = 192
KF0 = 208; NKF = 6
VF0 = 232; NVF = 6
S_Q = 12; S_K = 16; S_V = 20; S_O = 24
S_KOFF = 28; S_VOFF = 29; S_CNT = 30; S_W = 31; S_WK = 32; S_WV = 33; S_C = 34; S_THR = 35

def vr(a, n): return "v[%d:%d]" % (a, a + n - 1)

class LG:
    def __init__(s): s.q = []
    def issue(s, tag): s.q.append(tag)
    def wait(s, tag):
        if tag in s.q:
            i = s.q.index(tag)
            n = len(s.q) - 1 - i
            e("s_waitcnt lgkmcnt(%d)" % n)
            s.q = s.q[i + 1:]
lg = LG()

def dma_k(stage):
    e("s_add_u32 m0, s%d, %d" % (S_WK, stage * 16384))
    e("s_nop 0")
    e("buffer_load_dwordx4 v%d, s[%d:%d], s%d offen lds" % (V_VOK0, S_K, S_K + 3, S_KOFF))
    e("buffer_load_dwordx4 v%d, s[%d:%d], s%d offen offset:1024 lds" % (V_VOK1, S_K, S_K + 3, S_KOFF))
    e("s_add_u32 s%d, s%d, 16384" % (S_KOFF, S_KOFF))

def dma_v(stage):
    e("s_add_u32 m0, s%d, %d" % (S_WV, stage * 16384))
    e("s_nop 0")
    e("buffer_load_dwordx4 v%d, s[%d:%d], s%d offen lds" % (V_VOV, S_V, S_V + 3, S_VOFF))
    e("buffer_load_dwordx4 v%d, s[%d:%d], s%d offen offset:1024 lds" % (V_VOV, S_V, S_V + 3, S_VOFF))
    e("s_add_u32 s%d, s%d, 16384" % (S_VOFF, S_VOFF))

def kread(idx, stage):
    b, s = idx >> 3, idx & 7
    f = KF0 + 4 * (idx % NKF)
    e("ds_read_b128 %s, v%d offset:%d" % (vr(f, 4), KADDR + s, stage * 16384 + b * 8192))
    lg.issue(("k", idx))

def vread(idx, stage):
    ks, db = idx >> 2, idx & 3
    f = VF0 + 4 * (idx % NVF)
    e("ds_read_b64_tr_b16 %s, v%d offset:%d" % (vr(f, 2), VADDR + db, stage * 16384 + ks * 4096))
    lg.issue(("v0", idx))
    e("ds_read_b64_tr_b16 %s, v%d offset:%d" % (vr(f + 2, 2), VADDR + db, stage * 16384 + ks * 4096 + 2048))
    lg.issue(("v", idx))

def qk_mfma(idx, sreg):
    b, s = idx >> 3, idx & 7
    f = KF0 + 4 * (idx % NKF)
    d = sreg + 16 * b
    c = "0" if s == 0 else vr(d, 16)
    lg.wait(("k", idx))
    e("v_mfma_f32_32x32x16_bf16 %s, %s, %s, %s" % (vr(d, 16), vr(f, 4), vr(Q0 + 4 * s, 4), c))

def pv_mfma(idx):
    ks, db = idx >> 2, idx & 3
    f = VF0 + 4 * (idx % NVF)
    d = O0 + 16 * db
    lg.wait(("v", idx))
    e("v_mfma_f32_32x32x16_bf16 %s, %s, %s, %s" % (vr(d, 16), vr(f, 4), vr(P0 + 4 * ks, 4), vr(d, 16)))

rare = []
def smax_lead(sc, t):
    a = e
    a("v_max3_f32 v%d, v%d, v%d, v%d" % (V_T0, sc, sc + 1, sc + 2))
    a("v_max3_f32 v%d, v%d, v%d, v%d" % (V_T1, sc + 16, sc + 17, sc + 18))
    for i in range(6):
        a("v_max3_f32 v%d, v%d, v%d, v%d" % (V_T0, V_T0, sc + 3 + 2 * i, sc + 4 + 2 * i))
        a("v_max3_f32 v%d, v%d, v%d, v%d" % (V_T1, V_T1, sc + 19 + 2 * i, sc + 20 + 2 * i))
    a("v_max3_f32 v%d, v%d, v%d, v%d" % (V_T0, V_T0, sc + 15, sc + 31))
    a("v_max_f32 v%d, v%d, v%d" % (V_T0, V_T0, V_T1))
    a("v_mov_b32 v%d, v%d" % (V_T1, V_T0))
    a("s_nop 1")
    a("v_permlane32_swap_b32 v%d, v%d" % (V_T0, V_T1))
    a("v_max_f32 v%d, v%d, v%d" % (V_T0, V_T0, V_T1))
    a("v_fma_f32 v%d, v%d, s%d, -v%d" % (V_T1, V_T0, S_C, V_MC))
    a("v_cmp_lt_f32 vcc, s%d, v%d" % (S_THR, V_T1))
    a("s_nop 4")
    a("s_cbranch_vccnz L_rare%d" % t)
    lab("L_back%d" % t)
    r = rare.append
    r("L_rare%d:" % t)
    r("    s_nop 7"); r("    s_nop 7")
    r("    v_max_f32 v%d, v%d, v%d" % (V_M, V_M, V_T0))
    r("    v_mul_f32 v%d, s%d, v%d" % (V_T2, S_C, V_M))
    r("    v_sub_f32 v%d, v%d, v%d" % (V_AL, V_MC, V_T2))
    r("    v_exp_f32 v%d, v%d" % (V_AL, V_AL))
    r("    v_mov_b32 v%d, v%d" % (V_MC, V_T2))
    r("    s_nop 0")
    r("    v_mul_f32 v%d, v%d, v%d" % (V_L, V_L, V_AL))
    r("    v_mul_f32 v14, v14, v%d" % V_AL)
    r("    v_mul_f32 v15, v15, v%d" % V_AL)
    r("    v_sub_f32 v8, 0, v%d" % V_MC)
    r("    v_sub_f32 v9, 0, v%d" % V_MC)
    for i in range(64):
        r("    v_mul_f32 v%d, v%d, v%d" % (O0 + i, O0 + i, V_AL))
    r("    s_branch L_back%d" % t)

PK=os.environ.get('PK','1')
V_NM = 8; V_L2 = 14; S_C2 = 38
def smax_groups(sc, g0, g1):
    ops = []; a = ops.append
    for g in range(g0, g1 + 1):
        if g < g1:
            if PK:
                for i in range(0, 4, 2):
                    r = sc + 4 * g + i
                    a("v_pk_fma_f32 v[%d:%d], v[%d:%d], s[%d:%d], v[%d:%d]" % (r, r + 1, r, r + 1, S_C2, S_C2 + 1, V_NM, V_NM + 1))
            else:
                for i in range(4):
                    r = sc + 4 * g + i
                    a("v_fma_f32 v%d, v%d, s%d, -v%d" % (r, r, S_C, V_MC))
            for i in range(4):
                r = sc + 4 * g + i
                a("v_exp_f32 v%d, v%d" % (r, r))
        if g > g0:
            gg = g - 1
            if g == g1: a("s_nop 0")
            if PK:
                for i in range(0, 4, 2):
                    r = sc + 4 * gg + i
                    a("v_pk_add_f32 v[%d:%d], v[%d:%d], v[%d:%d]" % (V_L2, V_L2 + 1, V_L2, V_L2 + 1, r, r + 1))
            else:
                for i in range(4):
                    a("v_add_f32 v%d, v%d, v%d" % (V_L, V_L, sc + 4 * gg + i))
            a("v_cvt_pk_bf16_f32 v%d, v%d, v%d" % (P0 + 2 * gg, sc + 4 * gg, sc + 4 * gg + 1))
            a("v_cvt_pk_bf16_f32 v%d, v%d, v%d" % (P0 + 2 * gg + 1, sc + 4 * gg + 2, sc + 4 * gg + 3))
    return ops

def tile(t, do_qk, do_dk, do_dv, vm):
    e("; ---- tile %d" % t)
    e("s_waitcnt vmcnt(%d)" % vm)
    e("s_barrier")
    if do_dk: dma_k(t % 4)
    if do_dv: dma_v((t + 3) % 4)
    scur = S0[t & 1]; snxt = S0[(t + 1) & 1]
    kst = (t + 1) % 4; vst = t % 4
    PRE = 4
    if do_qk:
        for i in range(PRE): kread(i, kst)
    else:
        for i in range(4): vread(i, vst)
    smax_lead(scur, t)
    opsA = smax_groups(scur, 0, 4)
    opsB = smax_groups(scur, 4, 8)
    if do_qk:
        per = (len(opsA) + 13) // 14
        for i in range(16):
            qk_mfma(i, snxt)
            if i + PRE < 16: kread(i + PRE, kst)
            elif i + PRE - 16 < 4: vread(i + PRE - 16, vst)
            for o in opsA[i * per:(i + 1) * per]: e(o)
    else:
        for o in opsA: e(o)
        e("s_nop 1")
    if PRIO=='b': e("s_setprio 1")
    per = (len(opsB) + 6) // 7
    for i in range(16):
        pv_mfma(i)
        if i + 4 < 16: vread(i + 4, vst)
        for o in opsB[i * per:(i + 1) * per]: e(o)
        if i == 7: e("s_nop 1")
    if PRIO=='b': e("s_setprio 0")

hdr = open("standalone__gqa_softmax__near_ridge.s.ref").read().split("\n")
head = []
for l in hdr:
    if l.startswith("; @launch"):
        head.append("; @launch grid=(256,1,1) block=(512,1,1) lds=131072")
        continue
    head.append(l)
    if l.startswith("standalone__gqa_softmax__near_ridge_kernel:"): break

e("s_cmp_ge_u32 s2, %d" % (0 if ABL=="empty" else 256))
e("s_cbranch_scc1 L_end")
e("s_load_dwordx8 s[4:11], s[0:1], 0")
e("v_lshrrev_b32 v1, 6, v0")
e("v_and_b32 v15, 63, v0")
e("s_nop 0")
e("v_readfirstlane_b32 s%d, v1" % S_W)
e("v_lshrrev_b32 v6, 4, v15")
e("v_lshl_add_u32 v7, v1, 3, v6")
e("v_and_b32 v8, 15, v15")
e("v_and_b32 v9, 15, v7")
e("v_xor_b32 v9, v8, v9")
e("v_lshlrev_b32 v9, 4, v9")
e("v_lshl_add_u32 v%d, v7, 8, v9" % V_VOK0)
e("v_add_u32 v9, 4, v7")
e("v_and_b32 v9, 15, v9")
e("v_xor_b32 v9, v8, v9")
e("v_lshlrev_b32 v9, 4, v9")
e("v_lshl_add_u32 v%d, v7, 8, v9" % V_VOK1)
e("v_lshlrev_b32 v9, 2, v6")
e("v_xor_b32 v9, v8, v9")
e("v_lshlrev_b32 v9, 4, v9")
e("v_lshl_add_u32 v%d, v7, 8, v9" % V_VOV)
e("v_lshrrev_b32 v6, 5, v15")
e("v_and_b32 v7, 31, v15")
e("v_xor_b32 v8, v8, v6")
for s in range(8):
    e("v_xor_b32 v9, %d, v8" % (2 * s))
    e("v_lshlrev_b32 v9, 4, v9")
    e("v_lshl_add_u32 v%d, v7, 8, v9" % (KADDR + s))
e("v_bfe_u32 v9, v15, 2, 2")
e("v_lshl_add_u32 v8, v6, 2, v9")
e("v_lshlrev_b32 v8, 8, v8")
e("v_bfe_u32 v1, v15, 4, 1")
e("v_lshlrev_b32 v1, 5, v1")
e("v_add_u32 v8, v8, v1")
e("v_and_b32 v1, 3, v15")
e("v_lshlrev_b32 v1, 3, v1")
e("v_add_u32 v8, v8, v1")
e("v_add_u32 v8, %d, v8" % VRING)
for db in range(4):
    e("v_xor_b32 v1, %d, v9" % db)
    e("v_lshl_add_u32 v%d, v1, 6, v8" % (VADDR + db))
e("v_lshrrev_b32 v1, 6, v0")
e("v_lshl_add_u32 v1, v1, 5, v7")
e("v_lshlrev_b32 v1, 8, v1")
e("v_lshl_add_u32 v%d, v6, 4, v1" % V_QOFF)
e("s_waitcnt lgkmcnt(0)")
e("s_mul_i32 s36, s2, 61440")
e("s_lshl_b32 s37, s2, 18")
e("s_add_u32 s%d, s4, s36" % S_Q);  e("s_addc_u32 s%d, s5, 0" % (S_Q + 1))
e("s_mov_b32 s%d, 61440" % (S_Q + 2)); e("s_mov_b32 s%d, 0x00020000" % (S_Q + 3))
e("s_add_u32 s%d, s6, s37" % S_K);  e("s_addc_u32 s%d, s7, 0" % (S_K + 1))
e("s_mov_b32 s%d, 262144" % (S_K + 2)); e("s_mov_b32 s%d, 0x00020000" % (S_K + 3))
e("s_add_u32 s%d, s8, s37" % S_V);  e("s_addc_u32 s%d, s9, 0" % (S_V + 1))
e("s_mov_b32 s%d, 262144" % (S_V + 2)); e("s_mov_b32 s%d, 0x00020000" % (S_V + 3))
e("s_add_u32 s%d, s10, s36" % S_O); e("s_addc_u32 s%d, s11, 0" % (S_O + 1))
e("s_mov_b32 s%d, 61440" % (S_O + 2)); e("s_mov_b32 s%d, 0x00020000" % (S_O + 3))
e("s_lshl_b32 s%d, s%d, 11" % (S_WK, S_W))
e("s_add_u32 s%d, s%d, %d" % (S_WV, S_WK, VRING))
e("s_mov_b32 s%d, 0" % S_KOFF)
e("s_mov_b32 s%d, 0" % S_VOFF)
e("s_mov_b32 s%d, 0x41000000" % S_THR)
e("s_mov_b32 s%d, 0x3e0293ee" % S_C)
for s in range(8):
    e("buffer_load_dwordx4 %s, v%d, s[%d:%d], 0 offen offset:%d" % (vr(Q0 + 4 * s, 4), V_QOFF, S_Q, S_Q + 3, 32 * s))
dma_k(0)
dma_k(1); dma_v(0)
dma_k(2); dma_v(1)
dma_k(3); dma_v(2)
e("v_mov_b32 v%d, 0xff800000" % V_M)
e("v_mov_b32 v%d, 0xff800000" % V_MC)
e("v_mov_b32 v%d, 0" % V_L)
e("v_mov_b32 v14, 0"); e("v_mov_b32 v15, 0"); e("v_mov_b32 v8, 0"); e("v_mov_b32 v9, 0")
e("s_mov_b32 s38, s%d" % S_C); e("s_mov_b32 s39, s%d" % S_C)
for i in range(64): e("v_mov_b32 v%d, 0" % (O0 + i))
e("s_waitcnt vmcnt(12)")
e("s_barrier")
for i in range(4): kread(i, 0)
for i in range(16):
    qk_mfma(i, S0[0])
    if i + 4 < 16: kread(i + 4, 0)
e("s_nop 7"); e("s_nop 7")
if PRIO=='a':
    e("s_cmp_ge_u32 s%d, 4" % S_W); e("s_cbranch_scc0 L_np"); e("s_setprio 1"); lab("L_np")
e("s_mov_b32 s%d, 0" % S_CNT)
lab("L_loop")
for t in range(4):
    tile(t, True, True, True, 8)
e("s_add_u32 s%d, s%d, 1" % (S_CNT, S_CNT))
e("s_cmp_lt_u32 s%d, 3" % S_CNT)
e("s_cbranch_scc1 L_loop")
tile(12, True, False, True, 8)
tile(13, True, False, False, 6)
tile(14, True, False, False, 2)
tile(15, False, False, False, 0)
e("v_add_f32 v14, v14, v15"); e("v_add_f32 v%d, v%d, v14" % (V_L, V_L))
e("v_mov_b32 v%d, v%d" % (V_T1, V_L))
e("s_nop 1")
e("v_permlane32_swap_b32 v%d, v%d" % (V_L, V_T1))
e("v_add_f32 v%d, v%d, v%d" % (V_L, V_L, V_T1))
e("v_rcp_f32 v%d, v%d" % (V_L, V_L))
e("s_nop 7"); e("s_nop 3")
for db in range(4):
    for jp in range(2):
        t = S0[0] + 4 * (2 * db + jp)
        for jj in range(2):
            for i in range(4):
                r = O0 + 16 * db + 4 * (2 * jp + jj) + i
                e("v_mul_f32 v%d, v%d, v%d" % (r, r, V_L))
        for jj in range(2):
            r = O0 + 16 * db + 4 * (2 * jp + jj)
            e("v_cvt_pk_bf16_f32 v%d, v%d, v%d" % (t + 2 * jj, r, r + 1))
            e("v_cvt_pk_bf16_f32 v%d, v%d, v%d" % (t + 2 * jj + 1, r + 2, r + 3))
        e("s_nop 1")
        e("v_permlane32_swap_b32 v%d, v%d" % (t, t + 2))
        e("v_permlane32_swap_b32 v%d, v%d" % (t + 1, t + 3))
        e("buffer_store_dwordx4 %s, v%d, s[%d:%d], 0 offen offset:%d" % (vr(t, 4), V_QOFF, S_O, S_O + 3, 64 * db + 32 * jp))
lab("L_end")
e("s_endpgm")
out.extend(rare)

tail = """.section .rodata,"a"
.p2align 6
.amdhsa_kernel standalone__gqa_softmax__near_ridge_kernel
  .amdhsa_next_free_vgpr 256
  .amdhsa_next_free_sgpr 48
  .amdhsa_accum_offset 256
  .amdhsa_group_segment_fixed_size 0
  .amdhsa_kernarg_size 48
  .amdhsa_user_sgpr_count 2
  .amdhsa_user_sgpr_kernarg_segment_ptr 1
  .amdhsa_system_sgpr_workgroup_id_x 1
.end_amdhsa_kernel
"""
path = sys.argv[1] if len(sys.argv) > 1 else "standalone__gqa_softmax__near_ridge.s"
open(path, "w").write("\n".join(head) + "\n" + "\n".join(out) + "\n" + tail)
```

```python
import sys, os
ABL=os.environ.get('ABL','')
NTF=os.environ.get('NTF','1')

PRIO=os.environ.get('PRIO','')
STAMP=os.environ.get('STAMP','')
NT = 16
KRING = 0
VRING = 65536

out = []
def e(s):
    if ABL=='mem' and (s.startswith('v_mfma') or s.startswith('ds_read') or s.startswith('v_exp') or s.startswith('v_fma') or s.startswith('v_max3') or s.startswith('v_cvt') or (s.startswith('v_mul') ) or s.startswith('v_add_f32')): return
    if ABL.startswith('comp') and s.endswith(' lds'): return
    if ABL=='compnov' and (s.startswith('v_exp') or s.startswith('v_fma') or s.startswith('v_max3') or s.startswith('v_cvt') or (s.startswith('v_mul') ) or s.startswith('v_add_f32')): return
    if ABL=='compmf' and (s.startswith('ds_read') or s.startswith('v_exp') or s.startswith('v_fma') or s.startswith('v_max3') or s.startswith('v_cvt') or (s.startswith('v_mul') ) or s.startswith('v_add_f32')): return
    if ABL=='compnolds' and s.startswith('ds_read'): return
    if ABL=='compnobar' and s.startswith('s_barrier'): return
    if NTF and 'buffer_load' in s:
        fl = os.environ.get('FL',' nt')
        s = (s[:-4] + fl + ' lds') if s.endswith(' lds') else s + fl
    if os.environ.get('ST') and 'buffer_store' in s: s = s + os.environ.get('ST')
    out.append("    " + s)
def lab(s): out.append(s + ":")

V_TID = 0; V_T0 = 1; V_M = 2; V_L = 3; V_MC = 4; V_AL = 5; V_T1 = 6; V_T2 = 7; V_T3 = 8; V_SUM = 9
V_VOK0 = 10; V_VOK1 = 11; V_VOV = 12; V_QOFF = 13; V_OOFF = 14; V_T4 = 15
KADDR = 16
VADDR = 24
Q0 = 32
O0 = 64
S0 = [128, 160]
P0 = 192
KF0 = 208; NKF = 6
VF0 = 232; NVF = 6
S_Q = 12; S_K = 16; S_V = 20; S_O = 24
S_KOFF = 28; S_VOFF = 29; S_CNT = 30; S_W = 31; S_WK = 32; S_WV = 33; S_C = 34; S_THR = 35

def vr(a, n): return "v[%d:%d]" % (a, a + n - 1)

class LG:
    def __init__(s): s.q = []
    def issue(s, tag): s.q.append(tag)
    def wait(s, tag):
        if tag in s.q:
            i = s.q.index(tag)
            n = len(s.q) - 1 - i
            e("s_waitcnt lgkmcnt(%d)" % n)
            s.q = s.q[i + 1:]
lg = LG()

def dma_k(stage):
    e("s_add_u32 m0, s%d, %d" % (S_WK, stage * 16384))
    e("s_nop 0")
    e("buffer_load_dwordx4 v%d, s[%d:%d], s%d offen lds" % (V_VOK0, S_K, S_K + 3, S_KOFF))
    e("buffer_load_dwordx4 v%d, s[%d:%d], s%d offen offset:1024 lds" % (V_VOK1, S_K, S_K + 3, S_KOFF))
    e("s_add_u32 s%d, s%d, 16384" % (S_KOFF, S_KOFF))

def dma_v(stage):
    e("s_add_u32 m0, s%d, %d" % (S_WV, stage * 16384))
    e("s_nop 0")
    e("buffer_load_dwordx4 v%d, s[%d:%d], s%d offen lds" % (V_VOV, S_V, S_V + 3, S_VOFF))
    e("buffer_load_dwordx4 v%d, s[%d:%d], s%d offen offset:1024 lds" % (V_VOV, S_V, S_V + 3, S_VOFF))
    e("s_add_u32 s%d, s%d, 16384" % (S_VOFF, S_VOFF))

def kread(idx, stage):
    b, s = idx >> 3, idx & 7
    f = KF0 + 4 * (idx % NKF)
    e("ds_read_b128 %s, v%d offset:%d" % (vr(f, 4), KADDR + s, stage * 16384 + b * 8192))
    lg.issue(("k", idx))

def vread(idx, stage):
    ks, db = idx >> 2, idx & 3
    f = VF0 + 4 * (idx % NVF)
    e("ds_read_b64_tr_b16 %s, v%d offset:%d" % (vr(f, 2), VADDR + db, stage * 16384 + ks * 4096))
    lg.issue(("v0", idx))
    e("ds_read_b64_tr_b16 %s, v%d offset:%d" % (vr(f + 2, 2), VADDR + db, stage * 16384 + ks * 4096 + 2048))
    lg.issue(("v", idx))

def qk_mfma(idx, sreg):
    b, s = idx >> 3, idx & 7
    f = KF0 + 4 * (idx % NKF)
    d = sreg + 16 * b
    c = "0" if s == 0 else vr(d, 16)
    lg.wait(("k", idx))
    e("v_mfma_f32_32x32x16_bf16 %s, %s, %s, %s" % (vr(d, 16), vr(f, 4), vr(Q0 + 4 * s, 4), c))

def pv_mfma(idx):
    ks, db = idx >> 2, idx & 3
    f = VF0 + 4 * (idx % NVF)
    d = O0 + 16 * db
    lg.wait(("v", idx))
    e("v_mfma_f32_32x32x16_bf16 %s, %s, %s, %s" % (vr(d, 16), vr(f, 4), vr(P0 + 4 * ks, 4), vr(d, 16)))

rare = []
def smax_lead(sc, t):
    ops = []; a = ops.append
    a("v_max3_f32 v%d, v%d, v%d, v%d" % (V_T0, sc, sc + 1, sc + 2))
    a("v_max3_f32 v%d, v%d, v%d, v%d" % (V_T1, sc + 16, sc + 17, sc + 18))
    for i in range(6):
        a("v_max3_f32 v%d, v%d, v%d, v%d" % (V_T0, V_T0, sc + 3 + 2 * i, sc + 4 + 2 * i))
        a("v_max3_f32 v%d, v%d, v%d, v%d" % (V_T1, V_T1, sc + 19 + 2 * i, sc + 20 + 2 * i))
    a("v_max3_f32 v%d, v%d, v%d, v%d" % (V_T0, V_T0, sc + 15, sc + 31))
    a("v_max_f32 v%d, v%d, v%d" % (V_T0, V_T0, V_T1))
    a("v_mov_b32 v%d, v%d" % (V_T1, V_T0))
    a("s_nop 1")
    a("v_permlane32_swap_b32 v%d, v%d" % (V_T0, V_T1))
    a("v_max_f32 v%d, v%d, v%d" % (V_T0, V_T0, V_T1))
    a("v_fma_f32 v%d, v%d, s%d, -v%d" % (V_T1, V_T0, S_C, V_MC))
    a("v_cmp_lt_f32 vcc, s%d, v%d" % (S_THR, V_T1))
    a("s_nop 4")
    a("s_cbranch_vccnz L_rare%d" % t)
    a("L_back%d:" % t)
    r = rare.append
    r("L_rare%d:" % t)
    r("    s_nop 7"); r("    s_nop 7")
    r("    v_max_f32 v%d, v%d, v%d" % (V_M, V_M, V_T0))
    r("    v_mul_f32 v%d, s%d, v%d" % (V_T2, S_C, V_M))
    r("    v_sub_f32 v%d, v%d, v%d" % (V_AL, V_MC, V_T2))
    r("    v_exp_f32 v%d, v%d" % (V_AL, V_AL))
    r("    v_mov_b32 v%d, v%d" % (V_MC, V_T2))
    r("    s_nop 0")
    r("    v_mul_f32 v%d, v%d, v%d" % (V_L, V_L, V_AL))
    r("    v_mul_f32 v14, v14, v%d" % V_AL)
    r("    v_mul_f32 v15, v15, v%d" % V_AL)
    r("    v_sub_f32 v8, 0, v%d" % V_MC)
    r("    v_sub_f32 v9, 0, v%d" % V_MC)
    for i in range(64):
        r("    v_mul_f32 v%d, v%d, v%d" % (O0 + i, O0 + i, V_AL))
    r("    s_branch L_back%d" % t)
    return ops
def em(o):
    if o.endswith(":"): out.append(o)
    else: e(o)

PK=os.environ.get('PK','')
V_NM = 8; V_L2 = 14; S_C2 = 38
def smax_groups(sc, g0, g1):
    ops = []; a = ops.append
    for g in range(g0, g1 + 1):
        if g < g1:
            if PK:
                for i in range(0, 4, 2):
                    r = sc + 4 * g + i
                    a("v_pk_fma_f32 v[%d:%d], v[%d:%d], s[%d:%d], v[%d:%d]" % (r, r + 1, r, r + 1, S_C2, S_C2 + 1, V_NM, V_NM + 1))
            else:
                for i in range(4):
                    r = sc + 4 * g + i
                    a("v_fma_f32 v%d, v%d, s%d, -v%d" % (r, r, S_C, V_MC))
            for i in range(4):
                r = sc + 4 * g + i
                a("v_exp_f32 v%d, v%d" % (r, r))
        if g > g0:
            gg = g - 1
            if g == g1: a("s_nop 0")
            if PK:
                for i in range(0, 4, 2):
                    r = sc + 4 * gg + i
                    a("v_pk_add_f32 v[%d:%d], v[%d:%d], v[%d:%d]" % (V_L2, V_L2 + 1, V_L2, V_L2 + 1, r, r + 1))
            else:
                for i in range(4):
                    a("v_add_f32 v%d, v%d, v%d" % (V_L, V_L, sc + 4 * gg + i))
            a("v_cvt_pk_bf16_f32 v%d, v%d, v%d" % (P0 + 2 * gg, sc + 4 * gg, sc + 4 * gg + 1))
            a("v_cvt_pk_bf16_f32 v%d, v%d, v%d" % (P0 + 2 * gg + 1, sc + 4 * gg + 2, sc + 4 * gg + 3))
    return ops

def tile(t, do_qk, do_dk, do_dv, vm, pre_next):
    e("; ---- tile %d" % t)
    e("s_waitcnt vmcnt(%d)" % vm)
    e("s_barrier")
    scur = S0[t & 1]; snxt = S0[(t + 1) & 1]
    kst = (t + 1) % 4; vst = t % 4
    PRE = 4
    if not do_qk:
        for i in range(4): vread(i, vst)
    lead = smax_lead(scur, t)
    opsA = smax_groups(scur, 0, 4)
    opsB = smax_groups(scur, 4, 8)
    if do_qk:
        plan = [[] for _ in range(16)]
        nl = 5; pl = (len(lead) + nl - 1) // nl
        for i in range(nl): plan[i] = lead[i * pl:(i + 1) * pl]
        pa = (len(opsA) + 8) // 9
        for i in range(9): plan[5 + i] = opsA[i * pa:(i + 1) * pa]
        for i in range(16):
            qk_mfma(i, snxt)
            if i == 0 and do_dk: dma_k(t % 4)
            if i == 1 and do_dv: dma_v((t + 3) % 4)
            if i + PRE < 16: kread(i + PRE, kst)
            elif i + PRE - 16 < 4: vread(i + PRE - 16, vst)
            for o in plan[i]: em(o)
    else:
        for o in lead + opsA: em(o)
        e("s_nop 1")
    if PRIO=='b': e("s_setprio 1")
    per = (len(opsB) + 6) // 7
    for i in range(16):
        pv_mfma(i)
        if i + 4 < 16: vread(i + 4, vst)
        elif pre_next: kread(i - 12, (t + 2) % 4)
        for o in opsB[i * per:(i + 1) * per]: e(o)
        if i == 7: e("s_nop 1")
    if PRIO=='b': e("s_setprio 0")

hdr = open("standalone__gqa_softmax__near_ridge.s.ref").read().split("\n")
head = []
for l in hdr:
    if l.startswith("; @launch"):
        head.append("; @launch grid=(256,1,1) block=(512,1,1) lds=131072")
        continue
    head.append(l)
    if l.startswith("standalone__gqa_softmax__near_ridge_kernel:"): break

e("s_cmp_ge_u32 s2, %d" % (0 if ABL=="empty" else 256))
e("s_cbranch_scc1 L_end")
e("s_load_dwordx8 s[4:11], s[0:1], 0")
if STAMP:
    e("s_load_dwordx2 s[44:45], s[0:1], 40")
    e("s_memtime s[40:41]"); e("s_memrealtime s[42:43]")
e("v_lshrrev_b32 v1, 6, v0")
e("v_and_b32 v15, 63, v0")
e("s_nop 0")
e("v_readfirstlane_b32 s%d, v1" % S_W)
e("v_lshrrev_b32 v6, 4, v15")
e("v_lshl_add_u32 v7, v1, 3, v6")
e("v_and_b32 v8, 15, v15")
e("v_and_b32 v9, 15, v7")
e("v_xor_b32 v9, v8, v9")
e("v_lshlrev_b32 v9, 4, v9")
e("v_lshl_add_u32 v%d, v7, 8, v9" % V_VOK0)
e("v_add_u32 v9, 4, v7")
e("v_and_b32 v9, 15, v9")
e("v_xor_b32 v9, v8, v9")
e("v_lshlrev_b32 v9, 4, v9")
e("v_lshl_add_u32 v%d, v7, 8, v9" % V_VOK1)
e("v_lshlrev_b32 v9, 2, v6")
e("v_xor_b32 v9, v8, v9")
e("v_lshlrev_b32 v9, 4, v9")
e("v_lshl_add_u32 v%d, v7, 8, v9" % V_VOV)
e("v_lshrrev_b32 v6, 5, v15")
e("v_and_b32 v7, 31, v15")
e("v_xor_b32 v8, v8, v6")
for s in range(8):
    e("v_xor_b32 v9, %d, v8" % (2 * s))
    e("v_lshlrev_b32 v9, 4, v9")
    e("v_lshl_add_u32 v%d, v7, 8, v9" % (KADDR + s))
e("v_bfe_u32 v9, v15, 2, 2")
e("v_lshl_add_u32 v8, v6, 2, v9")
e("v_lshlrev_b32 v8, 8, v8")
e("v_bfe_u32 v1, v15, 4, 1")
e("v_lshlrev_b32 v1, 5, v1")
e("v_add_u32 v8, v8, v1")
e("v_and_b32 v1, 3, v15")
e("v_lshlrev_b32 v1, 3, v1")
e("v_add_u32 v8, v8, v1")
e("v_add_u32 v8, %d, v8" % VRING)
for db in range(4):
    e("v_xor_b32 v1, %d, v9" % db)
    e("v_lshl_add_u32 v%d, v1, 6, v8" % (VADDR + db))
e("v_lshrrev_b32 v1, 6, v0")
e("v_lshl_add_u32 v1, v1, 5, v7")
e("v_lshlrev_b32 v1, 8, v1")
e("v_lshl_add_u32 v%d, v6, 4, v1" % V_QOFF)
e("s_waitcnt lgkmcnt(0)")
e("s_mul_i32 s36, s2, 61440")
e("s_lshl_b32 s37, s2, 18")
e("s_add_u32 s%d, s4, s36" % S_Q);  e("s_addc_u32 s%d, s5, 0" % (S_Q + 1))
e("s_mov_b32 s%d, 61440" % (S_Q + 2)); e("s_mov_b32 s%d, 0x00020000" % (S_Q + 3))
e("s_add_u32 s%d, s6, s37" % S_K);  e("s_addc_u32 s%d, s7, 0" % (S_K + 1))
e("s_mov_b32 s%d, 262144" % (S_K + 2)); e("s_mov_b32 s%d, 0x00020000" % (S_K + 3))
e("s_add_u32 s%d, s8, s37" % S_V);  e("s_addc_u32 s%d, s9, 0" % (S_V + 1))
e("s_mov_b32 s%d, 262144" % (S_V + 2)); e("s_mov_b32 s%d, 0x00020000" % (S_V + 3))
e("s_add_u32 s%d, s10, s36" % S_O); e("s_addc_u32 s%d, s11, 0" % (S_O + 1))
e("s_mov_b32 s%d, 61440" % (S_O + 2)); e("s_mov_b32 s%d, 0x00020000" % (S_O + 3))
e("s_lshl_b32 s%d, s%d, 11" % (S_WK, S_W))
e("s_add_u32 s%d, s%d, %d" % (S_WV, S_WK, VRING))
e("s_mov_b32 s%d, 0" % S_KOFF)
e("s_mov_b32 s%d, 0" % S_VOFF)
e("s_mov_b32 s%d, 0x41000000" % S_THR)
e("s_mov_b32 s%d, 0x3e0293ee" % S_C)
for s in range(8):
    e("buffer_load_dwordx4 %s, v%d, s[%d:%d], 0 offen offset:%d" % (vr(Q0 + 4 * s, 4), V_QOFF, S_Q, S_Q + 3, 32 * s))
dma_k(0)
dma_k(1)
e("v_mov_b32 v%d, 0xff800000" % V_M)
e("v_mov_b32 v%d, 0xff800000" % V_MC)
e("v_mov_b32 v%d, 0" % V_L)
e("v_mov_b32 v14, 0"); e("v_mov_b32 v15, 0"); e("v_mov_b32 v8, 0"); e("v_mov_b32 v9, 0")
e("s_mov_b32 s38, s%d" % S_C); e("s_mov_b32 s39, s%d" % S_C)
for i in range(64): e("v_mov_b32 v%d, 0" % (O0 + i))
e("s_waitcnt vmcnt(0)")
e("s_barrier")
dma_v(0)
dma_k(2); dma_v(1)
dma_k(3); dma_v(2)
for i in range(4): kread(i, 0)
for i in range(16):
    qk_mfma(i, S0[0])
    if i + 4 < 16: kread(i + 4, 0)
    else: kread(i - 12, 1)
e("s_nop 7"); e("s_nop 7")
if PRIO=='a':
    e("s_cmp_ge_u32 s%d, 4" % S_W); e("s_cbranch_scc0 L_np"); e("s_setprio 1"); lab("L_np")
e("s_mov_b32 s%d, 0" % S_CNT)
if STAMP:
    e("s_memtime s[46:47]"); e("s_waitcnt lgkmcnt(0)")
lab("L_loop")
for t in range(4):
    tile(t, True, True, True, 6, True)
e("s_add_u32 s%d, s%d, 1" % (S_CNT, S_CNT))
e("s_cmp_lt_u32 s%d, 3" % S_CNT)
e("s_cbranch_scc1 L_loop")
tile(12, True, False, True, 6, True)
tile(13, True, False, False, 4, True)
tile(14, True, False, False, 2, False)
tile(15, False, False, False, 0, False)
e("v_add_f32 v14, v14, v15"); e("v_add_f32 v%d, v%d, v14" % (V_L, V_L))
e("v_mov_b32 v%d, v%d" % (V_T1, V_L))
e("s_nop 1")
e("v_permlane32_swap_b32 v%d, v%d" % (V_L, V_T1))
e("v_add_f32 v%d, v%d, v%d" % (V_L, V_L, V_T1))
e("v_rcp_f32 v%d, v%d" % (V_L, V_L))
e("s_nop 7"); e("s_nop 3")
for db in range(4):
    for jp in range(2):
        t = S0[0] + 4 * (2 * db + jp)
        for jj in range(2):
            for i in range(4):
                r = O0 + 16 * db + 4 * (2 * jp + jj) + i
                e("v_mul_f32 v%d, v%d, v%d" % (r, r, V_L))
        for jj in range(2):
            r = O0 + 16 * db + 4 * (2 * jp + jj)
            e("v_cvt_pk_bf16_f32 v%d, v%d, v%d" % (t + 2 * jj, r, r + 1))
            e("v_cvt_pk_bf16_f32 v%d, v%d, v%d" % (t + 2 * jj + 1, r + 2, r + 3))
        e("s_nop 1")
        e("v_permlane32_swap_b32 v%d, v%d" % (t, t + 2))
        e("v_permlane32_swap_b32 v%d, v%d" % (t + 1, t + 3))
        e("buffer_store_dwordx4 %s, v%d, s[%d:%d], 0 offen offset:%d" % (vr(t, 4), V_QOFF, S_O, S_O + 3, 64 * db + 32 * jp))
if STAMP:
    e("s_waitcnt vmcnt(0)")
    e("s_memtime s[48:49]"); e("s_memrealtime s[50:51]"); e("s_waitcnt lgkmcnt(0)")
    e("s_sub_u32 s48, s48, s40"); e("s_sub_u32 s50, s50, s42"); e("s_sub_u32 s46, s46, s40")
    e("s_mov_b32 s52, s44"); e("s_mov_b32 s53, s45"); e("s_mov_b32 s54, 0x100000"); e("s_mov_b32 s55, 0x00020000")
    e("v_mov_b32 v20, s48"); e("v_mov_b32 v21, s50"); e("v_mov_b32 v22, s46"); e("v_mov_b32 v23, s42")
    e("s_lshl_b32 s56, s2, 3"); e("s_add_u32 s56, s56, s%d" % S_W); e("s_lshl_b32 s56, s56, 4")
    e("v_mov_b32 v24, s56")
    e("v_and_b32 v25, 63, v0"); e("v_cmp_eq_u32 vcc, 0, v25")
    e("s_and_saveexec_b64 s[58:59], vcc")
    e("buffer_store_dwordx4 v[20:23], v24, s[52:55], 0 offen")
    e("s_waitcnt vmcnt(0)")
lab("L_end")
e("s_endpgm")
out.extend(rare)

tail = """.section .rodata,"a"
.p2align 6
.amdhsa_kernel standalone__gqa_softmax__near_ridge_kernel
  .amdhsa_next_free_vgpr 256
  .amdhsa_next_free_sgpr 64
  .amdhsa_accum_offset 256
  .amdhsa_group_segment_fixed_size 0
  .amdhsa_kernarg_size 48
  .amdhsa_user_sgpr_count 2
  .amdhsa_user_sgpr_kernarg_segment_ptr 1
  .amdhsa_system_sgpr_workgroup_id_x 1
.end_amdhsa_kernel
"""
path = sys.argv[1] if len(sys.argv) > 1 else "standalone__gqa_softmax__near_ridge.s"
open(path, "w").write("\n".join(head) + "\n" + "\n".join(out) + "\n" + tail)
```

```python
import sys, os
ABL=os.environ.get('ABL','')
NTF=os.environ.get('NTF','1')

PRIO=os.environ.get('PRIO','')
STAMP=os.environ.get('STAMP','')
NT = 16
KRING = 0
VRING = 65536

out = []
def e(s):
    if ABL=='mem' and (s.startswith('v_mfma') or s.startswith('ds_read') or s.startswith('v_exp') or s.startswith('v_fma') or s.startswith('v_max3') or s.startswith('v_cvt') or (s.startswith('v_mul') ) or s.startswith('v_add_f32')): return
    if ABL.startswith('comp') and s.endswith(' lds'): return
    if ABL=='compnov' and (s.startswith('v_exp') or s.startswith('v_fma') or s.startswith('v_max3') or s.startswith('v_cvt') or (s.startswith('v_mul') ) or s.startswith('v_add_f32')): return
    if ABL=='compmf' and (s.startswith('ds_read') or s.startswith('v_exp') or s.startswith('v_fma') or s.startswith('v_max3') or s.startswith('v_cvt') or (s.startswith('v_mul') ) or s.startswith('v_add_f32')): return
    if ABL=='compnolds' and s.startswith('ds_read'): return
    if ABL=='compnobar' and s.startswith('s_barrier'): return
    if NTF and 'buffer_load' in s:
        fl = os.environ.get('FL',' nt')
        s = (s[:-4] + fl + ' lds') if s.endswith(' lds') else s + fl
    if os.environ.get('ST') and 'buffer_store' in s: s = s + os.environ.get('ST')
    out.append("    " + s)
def lab(s): out.append(s + ":")

V_TID = 0; V_T0 = 1; V_M = 2; V_L = 3; V_MC = 4; V_AL = 5; V_T1 = 6; V_T2 = 7; V_T3 = 8; V_SUM = 9
V_VOK0 = 10; V_VOK1 = 11; V_VOV = 12; V_QOFF = 13; V_OOFF = 14; V_T4 = 15
KADDR = 16
VADDR = 24
Q0 = 32
O0 = 64
S0 = [128, 160]
P0 = 192
KF0 = 208; NKF = 6
VF0 = 232; NVF = 6
S_Q = 12; S_K = 16; S_V = 20; S_O = 24
S_KOFF = 28; S_VOFF = 29; S_CNT = 30; S_W = 31; S_WK = 32; S_WV = 33; S_C = 34; S_THR = 35

def vr(a, n): return "v[%d:%d]" % (a, a + n - 1)

class LG:
    def __init__(s): s.q = []
    def issue(s, tag): s.q.append(tag)
    def wait(s, tag):
        if tag in s.q:
            i = s.q.index(tag)
            n = len(s.q) - 1 - i
            e("s_waitcnt lgkmcnt(%d)" % n)
            s.q = s.q[i + 1:]
lg = LG()

def dma_k(stage):
    e("s_add_u32 m0, s%d, %d" % (S_WK, stage * 16384))
    e("s_nop 0")
    e("buffer_load_dwordx4 v%d, s[%d:%d], s%d offen lds" % (V_VOK0, S_K, S_K + 3, S_KOFF))
    e("buffer_load_dwordx4 v%d, s[%d:%d], s%d offen offset:1024 lds" % (V_VOK1, S_K, S_K + 3, S_KOFF))
    e("s_add_u32 s%d, s%d, 16384" % (S_KOFF, S_KOFF))

def dma_v(stage):
    e("s_add_u32 m0, s%d, %d" % (S_WV, stage * 16384))
    e("s_nop 0")
    e("buffer_load_dwordx4 v%d, s[%d:%d], s%d offen lds" % (V_VOV, S_V, S_V + 3, S_VOFF))
    e("buffer_load_dwordx4 v%d, s[%d:%d], s%d offen offset:1024 lds" % (V_VOV, S_V, S_V + 3, S_VOFF))
    e("s_add_u32 s%d, s%d, 16384" % (S_VOFF, S_VOFF))

def kread(idx, stage):
    b, s = idx >> 3, idx & 7
    f = KF0 + 4 * (idx % NKF)
    e("ds_read_b128 %s, v%d offset:%d" % (vr(f, 4), KADDR + s, stage * 16384 + b * 8192))
    lg.issue(("k", idx))

def vread(idx, stage):
    ks, db = idx >> 2, idx & 3
    f = VF0 + 4 * (idx % NVF)
    e("ds_read_b64_tr_b16 %s, v%d offset:%d" % (vr(f, 2), VADDR + db, stage * 16384 + ks * 4096))
    lg.issue(("v0", idx))
    e("ds_read_b64_tr_b16 %s, v%d offset:%d" % (vr(f + 2, 2), VADDR + db, stage * 16384 + ks * 4096 + 2048))
    lg.issue(("v", idx))

def qk_mfma(idx, sreg):
    b, s = idx >> 3, idx & 7
    f = KF0 + 4 * (idx % NKF)
    d = sreg + 16 * b
    c = "0" if s == 0 else vr(d, 16)
    lg.wait(("k", idx))
    e("v_mfma_f32_32x32x16_bf16 %s, %s, %s, %s" % (vr(d, 16), vr(f, 4), vr(Q0 + 4 * s, 4), c))

def pv_mfma(idx):
    ks, db = idx >> 2, idx & 3
    f = VF0 + 4 * (idx % NVF)
    d = O0 + 16 * db
    lg.wait(("v", idx))
    e("v_mfma_f32_32x32x16_bf16 %s, %s, %s, %s" % (vr(d, 16), vr(f, 4), vr(P0 + 4 * ks, 4), vr(d, 16)))

rare = []
def smax_lead(sc, t):
    ops = []; a = ops.append
    a("v_max3_f32 v%d, v%d, v%d, v%d" % (V_T0, sc, sc + 1, sc + 2))
    a("v_max3_f32 v%d, v%d, v%d, v%d" % (V_T1, sc + 16, sc + 17, sc + 18))
    for i in range(6):
        a("v_max3_f32 v%d, v%d, v%d, v%d" % (V_T0, V_T0, sc + 3 + 2 * i, sc + 4 + 2 * i))
        a("v_max3_f32 v%d, v%d, v%d, v%d" % (V_T1, V_T1, sc + 19 + 2 * i, sc + 20 + 2 * i))
    a("v_max3_f32 v%d, v%d, v%d, v%d" % (V_T0, V_T0, sc + 15, sc + 31))
    a("v_max_f32 v%d, v%d, v%d" % (V_T0, V_T0, V_T1))
    a("v_mov_b32 v%d, v%d" % (V_T1, V_T0))
    a("s_nop 1")
    a("v_permlane32_swap_b32 v%d, v%d" % (V_T0, V_T1))
    a("v_max_f32 v%d, v%d, v%d" % (V_T0, V_T0, V_T1))
    a("v_fma_f32 v%d, v%d, s%d, -v%d" % (V_T1, V_T0, S_C, V_MC))
    a("v_cmp_lt_f32 vcc, s%d, v%d" % (S_THR, V_T1))
    a("s_nop 4")
    a("s_cbranch_vccnz L_rare%d" % t)
    a("L_back%d:" % t)
    r = rare.append
    r("L_rare%d:" % t)
    r("    s_nop 7"); r("    s_nop 7")
    r("    v_max_f32 v%d, v%d, v%d" % (V_M, V_M, V_T0))
    r("    v_mul_f32 v%d, s%d, v%d" % (V_T2, S_C, V_M))
    r("    v_sub_f32 v%d, v%d, v%d" % (V_AL, V_MC, V_T2))
    r("    v_exp_f32 v%d, v%d" % (V_AL, V_AL))
    r("    v_mov_b32 v%d, v%d" % (V_MC, V_T2))
    r("    s_nop 0")
    r("    v_mul_f32 v%d, v%d, v%d" % (V_L, V_L, V_AL))
    r("    v_mul_f32 v14, v14, v%d" % V_AL)
    r("    v_mul_f32 v15, v15, v%d" % V_AL)
    r("    v_sub_f32 v8, 0, v%d" % V_MC)
    r("    v_sub_f32 v9, 0, v%d" % V_MC)
    for i in range(64):
        r("    v_mul_f32 v%d, v%d, v%d" % (O0 + i, O0 + i, V_AL))
    r("    s_branch L_back%d" % t)
    return ops
def em(o):
    if o.endswith(":"): out.append(o)
    else: e(o)

PK=os.environ.get('PK','')
V_NM = 8; V_L2 = 14; S_C2 = 38
def smax_groups(sc, g0, g1):
    ops = []; a = ops.append
    for g in range(g0, g1 + 1):
        if g < g1:
            if PK:
                for i in range(0, 4, 2):
                    r = sc + 4 * g + i
                    a("v_pk_fma_f32 v[%d:%d], v[%d:%d], s[%d:%d], v[%d:%d]" % (r, r + 1, r, r + 1, S_C2, S_C2 + 1, V_NM, V_NM + 1))
            else:
                for i in range(4):
                    r = sc + 4 * g + i
                    a("v_fma_f32 v%d, v%d, s%d, -v%d" % (r, r, S_C, V_MC))
            for i in range(4):
                r = sc + 4 * g + i
                a("v_exp_f32 v%d, v%d" % (r, r))
        if g > g0:
            gg = g - 1
            if g == g1: a("s_nop 0")
            if PK:
                for i in range(0, 4, 2):
                    r = sc + 4 * gg + i
                    a("v_pk_add_f32 v[%d:%d], v[%d:%d], v[%d:%d]" % (V_L2, V_L2 + 1, V_L2, V_L2 + 1, r, r + 1))
            else:
                for i in range(4):
                    a("v_add_f32 v%d, v%d, v%d" % (V_L, V_L, sc + 4 * gg + i))
            a("v_cvt_pk_bf16_f32 v%d, v%d, v%d" % (P0 + 2 * gg, sc + 4 * gg, sc + 4 * gg + 1))
            a("v_cvt_pk_bf16_f32 v%d, v%d, v%d" % (P0 + 2 * gg + 1, sc + 4 * gg + 2, sc + 4 * gg + 3))
    return ops

def tile(t, do_qk, do_dk, do_dv, vm, pre_next):
    e("; ---- tile %d" % t)
    e("s_waitcnt vmcnt(%d)" % vm)
    e("s_barrier")
    scur = S0[t & 1]; snxt = S0[(t + 1) & 1]
    kst = (t + 1) % 4; vst = t % 4
    PRE = 4
    if not do_qk:
        for i in range(4): vread(i, vst)
    lead = smax_lead(scur, t)
    opsA = smax_groups(scur, 0, 4)
    opsB = smax_groups(scur, 4, 8)
    if do_qk:
        plan = [[] for _ in range(16)]
        nl = 5; pl = (len(lead) + nl - 1) // nl
        for i in range(nl): plan[i] = lead[i * pl:(i + 1) * pl]
        pa = (len(opsA) + 8) // 9
        for i in range(9): plan[5 + i] = opsA[i * pa:(i + 1) * pa]
        for i in range(16):
            qk_mfma(i, snxt)
            if i == 0 and do_dk: dma_k(t % 4)
            if i == 1 and do_dv: dma_v((t + 3) % 4)
            if i + PRE < 16: kread(i + PRE, kst)
            elif i + PRE - 16 < 4: vread(i + PRE - 16, vst)
            for o in plan[i]: em(o)
    else:
        for o in lead + opsA: em(o)
        e("s_nop 1")
    if PRIO=='b': e("s_setprio 1")
    per = (len(opsB) + 6) // 7
    for i in range(16):
        pv_mfma(i)
        if i + 4 < 16: vread(i + 4, vst)
        elif pre_next: kread(i - 12, (t + 2) % 4)
        for o in opsB[i * per:(i + 1) * per]: e(o)
        if i == 7: e("s_nop 1")
    if PRIO=='b': e("s_setprio 0")

hdr = open("standalone__gqa_softmax__near_ridge.s.ref").read().split("\n")
head = []
for l in hdr:
    if l.startswith("; @launch"):
        head.append("; @launch grid=(256,1,1) block=(512,1,1) lds=131072")
        continue
    head.append(l)
    if l.startswith("standalone__gqa_softmax__near_ridge_kernel:"): break

e("s_cmp_ge_u32 s2, %d" % (0 if ABL=="empty" else 256))
e("s_cbranch_scc1 L_end")
e("s_load_dwordx8 s[4:11], s[0:1], 0")
if STAMP:
    e("s_load_dwordx2 s[44:45], s[0:1], 40")
    e("s_memtime s[40:41]"); e("s_memrealtime s[42:43]")
e("v_lshrrev_b32 v1, 6, v0")
e("v_and_b32 v15, 63, v0")
e("s_nop 0")
e("v_readfirstlane_b32 s%d, v1" % S_W)
e("v_lshrrev_b32 v6, 4, v15")
e("v_lshl_add_u32 v7, v1, 3, v6")
e("v_and_b32 v8, 15, v15")
e("v_and_b32 v9, 15, v7")
e("v_xor_b32 v9, v8, v9")
e("v_lshlrev_b32 v9, 4, v9")
e("v_lshl_add_u32 v%d, v7, 8, v9" % V_VOK0)
e("v_add_u32 v9, 4, v7")
e("v_and_b32 v9, 15, v9")
e("v_xor_b32 v9, v8, v9")
e("v_lshlrev_b32 v9, 4, v9")
e("v_lshl_add_u32 v%d, v7, 8, v9" % V_VOK1)
e("v_lshlrev_b32 v9, 2, v6")
e("v_xor_b32 v9, v8, v9")
e("v_lshlrev_b32 v9, 4, v9")
e("v_lshl_add_u32 v%d, v7, 8, v9" % V_VOV)
e("v_lshrrev_b32 v6, 5, v15")
e("v_and_b32 v7, 31, v15")
e("v_xor_b32 v8, v8, v6")
for s in range(8):
    e("v_xor_b32 v9, %d, v8" % (2 * s))
    e("v_lshlrev_b32 v9, 4, v9")
    e("v_lshl_add_u32 v%d, v7, 8, v9" % (KADDR + s))
e("v_bfe_u32 v9, v15, 2, 2")
e("v_lshl_add_u32 v8, v6, 2, v9")
e("v_lshlrev_b32 v8, 8, v8")
e("v_bfe_u32 v1, v15, 4, 1")
e("v_lshlrev_b32 v1, 5, v1")
e("v_add_u32 v8, v8, v1")
e("v_and_b32 v1, 3, v15")
e("v_lshlrev_b32 v1, 3, v1")
e("v_add_u32 v8, v8, v1")
e("v_add_u32 v8, %d, v8" % VRING)
for db in range(4):
    e("v_xor_b32 v1, %d, v9" % db)
    e("v_lshl_add_u32 v%d, v1, 6, v8" % (VADDR + db))
e("v_lshrrev_b32 v1, 6, v0")
e("v_lshl_add_u32 v1, v1, 5, v7")
e("v_lshlrev_b32 v1, 8, v1")
e("v_lshl_add_u32 v%d, v6, 4, v1" % V_QOFF)
e("s_waitcnt lgkmcnt(0)")
e("s_mul_i32 s36, s2, 61440")
e("s_lshl_b32 s37, s2, 18")
e("s_add_u32 s%d, s4, s36" % S_Q);  e("s_addc_u32 s%d, s5, 0" % (S_Q + 1))
e("s_mov_b32 s%d, 61440" % (S_Q + 2)); e("s_mov_b32 s%d, 0x00020000" % (S_Q + 3))
e("s_add_u32 s%d, s6, s37" % S_K);  e("s_addc_u32 s%d, s7, 0" % (S_K + 1))
e("s_mov_b32 s%d, 262144" % (S_K + 2)); e("s_mov_b32 s%d, 0x00020000" % (S_K + 3))
e("s_add_u32 s%d, s8, s37" % S_V);  e("s_addc_u32 s%d, s9, 0" % (S_V + 1))
e("s_mov_b32 s%d, 262144" % (S_V + 2)); e("s_mov_b32 s%d, 0x00020000" % (S_V + 3))
e("s_add_u32 s%d, s10, s36" % S_O); e("s_addc_u32 s%d, s11, 0" % (S_O + 1))
e("s_mov_b32 s%d, 61440" % (S_O + 2)); e("s_mov_b32 s%d, 0x00020000" % (S_O + 3))
e("s_lshl_b32 s%d, s%d, 11" % (S_WK, S_W))
e("s_add_u32 s%d, s%d, %d" % (S_WV, S_WK, VRING))
e("s_mov_b32 s%d, 0" % S_KOFF)
e("s_mov_b32 s%d, 0" % S_VOFF)
e("s_mov_b32 s%d, 0x41000000" % S_THR)
e("s_mov_b32 s%d, 0x3e0293ee" % S_C)
for s in range(8):
    e("buffer_load_dwordx4 %s, v%d, s[%d:%d], 0 offen offset:%d" % (vr(Q0 + 4 * s, 4), V_QOFF, S_Q, S_Q + 3, 32 * s))
dma_k(0)
dma_k(1)
dma_v(0)
dma_k(2); dma_v(1)
dma_k(3); dma_v(2)
e("v_mov_b32 v%d, 0xff800000" % V_M)
e("v_mov_b32 v%d, 0xff800000" % V_MC)
e("v_mov_b32 v%d, 0" % V_L)
e("v_mov_b32 v14, 0"); e("v_mov_b32 v15, 0"); e("v_mov_b32 v8, 0"); e("v_mov_b32 v9, 0")
e("s_mov_b32 s38, s%d" % S_C); e("s_mov_b32 s39, s%d" % S_C)
for i in range(64): e("v_mov_b32 v%d, 0" % (O0 + i))
e("s_waitcnt vmcnt(10)")
e("s_barrier")
for i in range(4): kread(i, 0)
for i in range(16):
    qk_mfma(i, S0[0])
    if i + 4 < 16: kread(i + 4, 0)
    else: kread(i - 12, 1)
e("s_nop 7"); e("s_nop 7")
if PRIO=='a':
    e("s_cmp_ge_u32 s%d, 4" % S_W); e("s_cbranch_scc0 L_np"); e("s_setprio 1"); lab("L_np")
e("s_mov_b32 s%d, 0" % S_CNT)
if STAMP:
    e("s_memtime s[46:47]"); e("s_waitcnt lgkmcnt(0)")
lab("L_loop")
for t in range(4):
    tile(t, True, True, True, 6, True)
e("s_add_u32 s%d, s%d, 1" % (S_CNT, S_CNT))
e("s_cmp_lt_u32 s%d, 3" % S_CNT)
e("s_cbranch_scc1 L_loop")
tile(12, True, False, True, 6, True)
tile(13, True, False, False, 4, True)
tile(14, True, False, False, 2, False)
tile(15, False, False, False, 0, False)
e("v_add_f32 v14, v14, v15"); e("v_add_f32 v%d, v%d, v14" % (V_L, V_L))
e("v_mov_b32 v%d, v%d" % (V_T1, V_L))
e("s_nop 1")
e("v_permlane32_swap_b32 v%d, v%d" % (V_L, V_T1))
e("v_add_f32 v%d, v%d, v%d" % (V_L, V_L, V_T1))
e("v_rcp_f32 v%d, v%d" % (V_L, V_L))
e("s_nop 7"); e("s_nop 3")
for db in range(4):
    for jp in range(2):
        t = S0[0] + 4 * (2 * db + jp)
        for jj in range(2):
            for i in range(4):
                r = O0 + 16 * db + 4 * (2 * jp + jj) + i
                e("v_mul_f32 v%d, v%d, v%d" % (r, r, V_L))
        for jj in range(2):
            r = O0 + 16 * db + 4 * (2 * jp + jj)
            e("v_cvt_pk_bf16_f32 v%d, v%d, v%d" % (t + 2 * jj, r, r + 1))
            e("v_cvt_pk_bf16_f32 v%d, v%d, v%d" % (t + 2 * jj + 1, r + 2, r + 3))
        e("s_nop 1")
        e("v_permlane32_swap_b32 v%d, v%d" % (t, t + 2))
        e("v_permlane32_swap_b32 v%d, v%d" % (t + 1, t + 3))
        e("buffer_store_dwordx4 %s, v%d, s[%d:%d], 0 offen offset:%d" % (vr(t, 4), V_QOFF, S_O, S_O + 3, 64 * db + 32 * jp))
if STAMP:
    e("s_waitcnt vmcnt(0)")
    e("s_memtime s[48:49]"); e("s_memrealtime s[50:51]"); e("s_waitcnt lgkmcnt(0)")
    e("s_sub_u32 s48, s48, s40"); e("s_sub_u32 s50, s50, s42"); e("s_sub_u32 s46, s46, s40")
    e("s_mov_b32 s52, s44"); e("s_mov_b32 s53, s45"); e("s_mov_b32 s54, 0x100000"); e("s_mov_b32 s55, 0x00020000")
    e("v_mov_b32 v20, s48"); e("v_mov_b32 v21, s50"); e("v_mov_b32 v22, s46"); e("v_mov_b32 v23, s42")
    e("s_lshl_b32 s56, s2, 3"); e("s_add_u32 s56, s56, s%d" % S_W); e("s_lshl_b32 s56, s56, 4")
    e("v_mov_b32 v24, s56")
    e("v_and_b32 v25, 63, v0"); e("v_cmp_eq_u32 vcc, 0, v25")
    e("s_and_saveexec_b64 s[58:59], vcc")
    e("buffer_store_dwordx4 v[20:23], v24, s[52:55], 0 offen")
    e("s_waitcnt vmcnt(0)")
lab("L_end")
e("s_endpgm")
out.extend(rare)

tail = """.section .rodata,"a"
.p2align 6
.amdhsa_kernel standalone__gqa_softmax__near_ridge_kernel
  .amdhsa_next_free_vgpr 256
  .amdhsa_next_free_sgpr 64
  .amdhsa_accum_offset 256
  .amdhsa_group_segment_fixed_size 0
  .amdhsa_kernarg_size 48
  .amdhsa_user_sgpr_count 2
  .amdhsa_user_sgpr_kernarg_segment_ptr 1
  .amdhsa_system_sgpr_workgroup_id_x 1
.end_amdhsa_kernel
"""
path = sys.argv[1] if len(sys.argv) > 1 else "standalone__gqa_softmax__near_ridge.s"
open(path, "w").write("\n".join(head) + "\n" + "\n".join(out) + "\n" + tail)
```

```python
import sys, os
ABL=os.environ.get('ABL','')
NTF=os.environ.get('NTF','1')

PRIO=os.environ.get('PRIO','')
STAMP=os.environ.get('STAMP','')
NT = 16
KRING = 0
VRING = 65536

out = []
def e(s):
    if ABL=='mem' and (s.startswith('v_mfma') or s.startswith('ds_read') or s.startswith('v_exp') or s.startswith('v_fma') or s.startswith('v_max3') or s.startswith('v_cvt') or (s.startswith('v_mul') ) or s.startswith('v_add_f32')): return
    if ABL.startswith('comp') and s.endswith(' lds'): return
    if ABL=='compnov' and (s.startswith('v_exp') or s.startswith('v_fma') or s.startswith('v_max3') or s.startswith('v_cvt') or (s.startswith('v_mul') ) or s.startswith('v_add_f32')): return
    if ABL=='compmf' and (s.startswith('ds_read') or s.startswith('v_exp') or s.startswith('v_fma') or s.startswith('v_max3') or s.startswith('v_cvt') or (s.startswith('v_mul') ) or s.startswith('v_add_f32')): return
    if ABL=='compnolds' and s.startswith('ds_read'): return
    if ABL=='compnobar' and s.startswith('s_barrier'): return
    if NTF and 'buffer_load' in s and (s.endswith(' lds') or os.environ.get('QNT')):
        fl = os.environ.get('FL',' nt')
        s = (s[:-4] + fl + ' lds') if s.endswith(' lds') else s + fl
    if os.environ.get('ST') and 'buffer_store' in s: s = s + os.environ.get('ST')
    out.append("    " + s)
def lab(s): out.append(s + ":")

V_TID = 0; V_T0 = 1; V_M = 2; V_L = 3; V_MC = 4; V_AL = 5; V_T1 = 6; V_T2 = 7; V_T3 = 8; V_SUM = 9
V_VOK0 = 10; V_VOK1 = 11; V_VOV = 12; V_QOFF = 13; V_OOFF = 14; V_T4 = 15
KADDR = 16
VADDR = 24
Q0 = 32
O0 = 64
S0 = [128, 160]
P0 = 192
KF0 = 208; NKF = 6
VF0 = 232; NVF = 6
S_Q = 12; S_K = 16; S_V = 20; S_O = 24
S_KOFF = 28; S_VOFF = 29; S_CNT = 30; S_W = 31; S_WK = 32; S_WV = 33; S_C = 34; S_THR = 35

def vr(a, n): return "v[%d:%d]" % (a, a + n - 1)

class LG:
    def __init__(s): s.q = []
    def issue(s, tag): s.q.append(tag)
    def wait(s, tag):
        if tag in s.q:
            i = s.q.index(tag)
            n = len(s.q) - 1 - i
            e("s_waitcnt lgkmcnt(%d)" % n)
            s.q = s.q[i + 1:]
lg = LG()

def dma_k(stage):
    e("s_add_u32 m0, s%d, %d" % (S_WK, stage * 16384))
    e("s_nop 0")
    e("buffer_load_dwordx4 v%d, s[%d:%d], s%d offen lds" % (V_VOK0, S_K, S_K + 3, S_KOFF))
    e("buffer_load_dwordx4 v%d, s[%d:%d], s%d offen offset:1024 lds" % (V_VOK1, S_K, S_K + 3, S_KOFF))
    e("s_add_u32 s%d, s%d, 16384" % (S_KOFF, S_KOFF))

def dma_v(stage):
    e("s_add_u32 m0, s%d, %d" % (S_WV, stage * 16384))
    e("s_nop 0")
    e("buffer_load_dwordx4 v%d, s[%d:%d], s%d offen lds" % (V_VOV, S_V, S_V + 3, S_VOFF))
    e("buffer_load_dwordx4 v%d, s[%d:%d], s%d offen offset:1024 lds" % (V_VOV, S_V, S_V + 3, S_VOFF))
    e("s_add_u32 s%d, s%d, 16384" % (S_VOFF, S_VOFF))

def kread(idx, stage):
    b, s = idx >> 3, idx & 7
    f = KF0 + 4 * (idx % NKF)
    e("ds_read_b128 %s, v%d offset:%d" % (vr(f, 4), KADDR + s, stage * 16384 + b * 8192))
    lg.issue(("k", idx))

def vread(idx, stage):
    ks, db = idx >> 2, idx & 3
    f = VF0 + 4 * (idx % NVF)
    e("ds_read_b64_tr_b16 %s, v%d offset:%d" % (vr(f, 2), VADDR + db, stage * 16384 + ks * 4096))
    lg.issue(("v0", idx))
    e("ds_read_b64_tr_b16 %s, v%d offset:%d" % (vr(f + 2, 2), VADDR + db, stage * 16384 + ks * 4096 + 2048))
    lg.issue(("v", idx))

def qk_mfma(idx, sreg):
    b, s = idx >> 3, idx & 7
    f = KF0 + 4 * (idx % NKF)
    d = sreg + 16 * b
    c = "0" if s == 0 else vr(d, 16)
    lg.wait(("k", idx))
    e("v_mfma_f32_32x32x16_bf16 %s, %s, %s, %s" % (vr(d, 16), vr(f, 4), vr(Q0 + 4 * s, 4), c))

def pv_mfma(idx):
    ks, db = idx >> 2, idx & 3
    f = VF0 + 4 * (idx % NVF)
    d = O0 + 16 * db
    lg.wait(("v", idx))
    e("v_mfma_f32_32x32x16_bf16 %s, %s, %s, %s" % (vr(d, 16), vr(f, 4), vr(P0 + 4 * ks, 4), vr(d, 16)))

rare = []
def smax_lead(sc, t):
    ops = []; a = ops.append
    a("v_max3_f32 v%d, v%d, v%d, v%d" % (V_T0, sc, sc + 1, sc + 2))
    a("v_max3_f32 v%d, v%d, v%d, v%d" % (V_T1, sc + 16, sc + 17, sc + 18))
    for i in range(6):
        a("v_max3_f32 v%d, v%d, v%d, v%d" % (V_T0, V_T0, sc + 3 + 2 * i, sc + 4 + 2 * i))
        a("v_max3_f32 v%d, v%d, v%d, v%d" % (V_T1, V_T1, sc + 19 + 2 * i, sc + 20 + 2 * i))
    a("v_max3_f32 v%d, v%d, v%d, v%d" % (V_T0, V_T0, sc + 15, sc + 31))
    a("v_max_f32 v%d, v%d, v%d" % (V_T0, V_T0, V_T1))
    a("v_mov_b32 v%d, v%d" % (V_T1, V_T0))
    a("s_nop 1")
    a("v_permlane32_swap_b32 v%d, v%d" % (V_T0, V_T1))
    a("v_max_f32 v%d, v%d, v%d" % (V_T0, V_T0, V_T1))
    a("v_fma_f32 v%d, v%d, s%d, -v%d" % (V_T1, V_T0, S_C, V_MC))
    a("v_cmp_lt_f32 vcc, s%d, v%d" % (S_THR, V_T1))
    a("s_nop 4")
    a("s_cbranch_vccnz L_rare%d" % t)
    a("L_back%d:" % t)
    r = rare.append
    r("L_rare%d:" % t)
    r("    s_nop 7"); r("    s_nop 7")
    r("    v_max_f32 v%d, v%d, v%d" % (V_M, V_M, V_T0))
    r("    v_mul_f32 v%d, s%d, v%d" % (V_T2, S_C, V_M))
    r("    v_sub_f32 v%d, v%d, v%d" % (V_AL, V_MC, V_T2))
    r("    v_exp_f32 v%d, v%d" % (V_AL, V_AL))
    r("    v_mov_b32 v%d, v%d" % (V_MC, V_T2))
    r("    s_nop 0")
    r("    v_mul_f32 v%d, v%d, v%d" % (V_L, V_L, V_AL))
    r("    v_mul_f32 v14, v14, v%d" % V_AL)
    r("    v_mul_f32 v15, v15, v%d" % V_AL)
    r("    v_sub_f32 v8, 0, v%d" % V_MC)
    r("    v_sub_f32 v9, 0, v%d" % V_MC)
    for i in range(64):
        r("    v_mul_f32 v%d, v%d, v%d" % (O0 + i, O0 + i, V_AL))
    r("    s_branch L_back%d" % t)
    return ops
def em(o):
    if o.endswith(":"): out.append(o)
    else: e(o)

PK=os.environ.get('PK','')
V_NM = 8; V_L2 = 14; S_C2 = 38
def smax_groups(sc, g0, g1):
    ops = []; a = ops.append
    for g in range(g0, g1 + 1):
        if g < g1:
            if PK:
                for i in range(0, 4, 2):
                    r = sc + 4 * g + i
                    a("v_pk_fma_f32 v[%d:%d], v[%d:%d], s[%d:%d], v[%d:%d]" % (r, r + 1, r, r + 1, S_C2, S_C2 + 1, V_NM, V_NM + 1))
            else:
                for i in range(4):
                    r = sc + 4 * g + i
                    a("v_fma_f32 v%d, v%d, s%d, -v%d" % (r, r, S_C, V_MC))
            for i in range(4):
                r = sc + 4 * g + i
                a("v_exp_f32 v%d, v%d" % (r, r))
        if g > g0:
            gg = g - 1
            if g == g1: a("s_nop 0")
            if PK:
                for i in range(0, 4, 2):
                    r = sc + 4 * gg + i
                    a("v_pk_add_f32 v[%d:%d], v[%d:%d], v[%d:%d]" % (V_L2, V_L2 + 1, V_L2, V_L2 + 1, r, r + 1))
            else:
                for i in range(4):
                    a("v_add_f32 v%d, v%d, v%d" % (V_L, V_L, sc + 4 * gg + i))
            a("v_cvt_pk_bf16_f32 v%d, v%d, v%d" % (P0 + 2 * gg, sc + 4 * gg, sc + 4 * gg + 1))
            a("v_cvt_pk_bf16_f32 v%d, v%d, v%d" % (P0 + 2 * gg + 1, sc + 4 * gg + 2, sc + 4 * gg + 3))
    return ops

def tile(t, do_qk, do_dk, do_dv, vm, pre_next):
    e("; ---- tile %d" % t)
    e("s_waitcnt vmcnt(%d)" % vm)
    e("s_barrier")
    scur = S0[t & 1]; snxt = S0[(t + 1) & 1]
    kst = (t + 1) % 4; vst = t % 4
    PRE = 4
    if not do_qk:
        for i in range(4): vread(i, vst)
    lead = smax_lead(scur, t)
    opsA = smax_groups(scur, 0, 4)
    opsB = smax_groups(scur, 4, 8)
    if do_qk:
        plan = [[] for _ in range(16)]
        nl = 5; pl = (len(lead) + nl - 1) // nl
        for i in range(nl): plan[i] = lead[i * pl:(i + 1) * pl]
        pa = (len(opsA) + 8) // 9
        for i in range(9): plan[5 + i] = opsA[i * pa:(i + 1) * pa]
        for i in range(16):
            qk_mfma(i, snxt)
            if i == 0 and do_dk: dma_k(t % 4)
            if i == 1 and do_dv: dma_v((t + 3) % 4)
            if i + PRE < 16: kread(i + PRE, kst)
            elif i + PRE - 16 < 4: vread(i + PRE - 16, vst)
            for o in plan[i]: em(o)
    else:
        for o in lead + opsA: em(o)
        e("s_nop 1")
    if PRIO=='b': e("s_setprio 1")
    per = (len(opsB) + 6) // 7
    for i in range(16):
        pv_mfma(i)
        if i + 4 < 16: vread(i + 4, vst)
        elif pre_next: kread(i - 12, (t + 2) % 4)
        for o in opsB[i * per:(i + 1) * per]: e(o)
        if i == 7: e("s_nop 1")
    if PRIO=='b': e("s_setprio 0")

hdr = open("standalone__gqa_softmax__near_ridge.s.ref").read().split("\n")
head = []
for l in hdr:
    if l.startswith("; @launch"):
        head.append("; @launch grid=(256,1,1) block=(512,1,1) lds=131072")
        continue
    head.append(l)
    if l.startswith("standalone__gqa_softmax__near_ridge_kernel:"): break

e("s_cmp_ge_u32 s2, %d" % (0 if ABL=="empty" else 256))
e("s_cbranch_scc1 L_end")
e("s_load_dwordx8 s[4:11], s[0:1], 0")
if STAMP:
    e("s_load_dwordx2 s[44:45], s[0:1], 40")
    e("s_memtime s[40:41]"); e("s_memrealtime s[42:43]")
e("v_lshrrev_b32 v1, 6, v0")
e("v_and_b32 v15, 63, v0")
e("s_nop 0")
e("v_readfirstlane_b32 s%d, v1" % S_W)
e("v_lshrrev_b32 v6, 4, v15")
e("v_lshl_add_u32 v7, v1, 3, v6")
e("v_and_b32 v8, 15, v15")
e("v_and_b32 v9, 15, v7")
e("v_xor_b32 v9, v8, v9")
e("v_lshlrev_b32 v9, 4, v9")
e("v_lshl_add_u32 v%d, v7, 8, v9" % V_VOK0)
e("v_add_u32 v9, 4, v7")
e("v_and_b32 v9, 15, v9")
e("v_xor_b32 v9, v8, v9")
e("v_lshlrev_b32 v9, 4, v9")
e("v_lshl_add_u32 v%d, v7, 8, v9" % V_VOK1)
e("v_lshlrev_b32 v9, 2, v6")
e("v_xor_b32 v9, v8, v9")
e("v_lshlrev_b32 v9, 4, v9")
e("v_lshl_add_u32 v%d, v7, 8, v9" % V_VOV)
e("v_lshrrev_b32 v6, 5, v15")
e("v_and_b32 v7, 31, v15")
e("v_xor_b32 v8, v8, v6")
for s in range(8):
    e("v_xor_b32 v9, %d, v8" % (2 * s))
    e("v_lshlrev_b32 v9, 4, v9")
    e("v_lshl_add_u32 v%d, v7, 8, v9" % (KADDR + s))
e("v_bfe_u32 v9, v15, 2, 2")
e("v_lshl_add_u32 v8, v6, 2, v9")
e("v_lshlrev_b32 v8, 8, v8")
e("v_bfe_u32 v1, v15, 4, 1")
e("v_lshlrev_b32 v1, 5, v1")
e("v_add_u32 v8, v8, v1")
e("v_and_b32 v1, 3, v15")
e("v_lshlrev_b32 v1, 3, v1")
e("v_add_u32 v8, v8, v1")
e("v_add_u32 v8, %d, v8" % VRING)
for db in range(4):
    e("v_xor_b32 v1, %d, v9" % db)
    e("v_lshl_add_u32 v%d, v1, 6, v8" % (VADDR + db))
e("v_lshrrev_b32 v1, 6, v0")
e("v_lshl_add_u32 v1, v1, 5, v7")
e("v_lshlrev_b32 v1, 8, v1")
e("v_lshl_add_u32 v%d, v6, 4, v1" % V_QOFF)
e("s_waitcnt lgkmcnt(0)")
if STAMP: e("s_memtime s[60:61]")
e("s_mul_i32 s36, s2, 61440")
e("s_lshl_b32 s37, s2, 18")
e("s_add_u32 s%d, s4, s36" % S_Q);  e("s_addc_u32 s%d, s5, 0" % (S_Q + 1))
e("s_mov_b32 s%d, 61440" % (S_Q + 2)); e("s_mov_b32 s%d, 0x00020000" % (S_Q + 3))
e("s_add_u32 s%d, s6, s37" % S_K);  e("s_addc_u32 s%d, s7, 0" % (S_K + 1))
e("s_mov_b32 s%d, 262144" % (S_K + 2)); e("s_mov_b32 s%d, 0x00020000" % (S_K + 3))
e("s_add_u32 s%d, s8, s37" % S_V);  e("s_addc_u32 s%d, s9, 0" % (S_V + 1))
e("s_mov_b32 s%d, 262144" % (S_V + 2)); e("s_mov_b32 s%d, 0x00020000" % (S_V + 3))
e("s_add_u32 s%d, s10, s36" % S_O); e("s_addc_u32 s%d, s11, 0" % (S_O + 1))
e("s_mov_b32 s%d, 61440" % (S_O + 2)); e("s_mov_b32 s%d, 0x00020000" % (S_O + 3))
e("s_lshl_b32 s%d, s%d, 11" % (S_WK, S_W))
e("s_add_u32 s%d, s%d, %d" % (S_WV, S_WK, VRING))
e("s_mov_b32 s%d, 0" % S_KOFF)
e("s_mov_b32 s%d, 0" % S_VOFF)
e("s_mov_b32 s%d, 0x41000000" % S_THR)
e("s_mov_b32 s%d, 0x3e0293ee" % S_C)
for s in range(8):
    e("buffer_load_dwordx4 %s, v%d, s[%d:%d], 0 offen offset:%d" % (vr(Q0 + 4 * s, 4), V_QOFF, S_Q, S_Q + 3, 32 * s))
dma_k(0)
dma_k(1)
dma_v(0)
dma_k(2); dma_v(1)
dma_k(3); dma_v(2)
e("v_mov_b32 v%d, 0xff800000" % V_M)
e("v_mov_b32 v%d, 0xff800000" % V_MC)
e("v_mov_b32 v%d, 0" % V_L)
e("v_mov_b32 v14, 0"); e("v_mov_b32 v15, 0"); e("v_mov_b32 v8, 0"); e("v_mov_b32 v9, 0")
e("s_mov_b32 s38, s%d" % S_C); e("s_mov_b32 s39, s%d" % S_C)
for i in range(64): e("v_mov_b32 v%d, 0" % (O0 + i))
e("s_waitcnt vmcnt(10)")
if STAMP: e("s_memtime s[62:63]")
e("s_barrier")
for i in range(4): kread(i, 0)
for i in range(16):
    qk_mfma(i, S0[0])
    if i + 4 < 16: kread(i + 4, 0)
    else: kread(i - 12, 1)
e("s_nop 7"); e("s_nop 7")
if PRIO=='a':
    e("s_cmp_ge_u32 s%d, 4" % S_W); e("s_cbranch_scc0 L_np"); e("s_setprio 1"); lab("L_np")
e("s_mov_b32 s%d, 0" % S_CNT)
if STAMP:
    e("s_memtime s[46:47]"); e("s_waitcnt lgkmcnt(0)")
lab("L_loop")
for t in range(4):
    tile(t, True, True, True, 6, True)
e("s_add_u32 s%d, s%d, 1" % (S_CNT, S_CNT))
e("s_cmp_lt_u32 s%d, 3" % S_CNT)
e("s_cbranch_scc1 L_loop")
tile(12, True, False, True, 6, True)
tile(13, True, False, False, 4, True)
tile(14, True, False, False, 2, False)
tile(15, False, False, False, 0, False)
e("v_add_f32 v14, v14, v15"); e("v_add_f32 v%d, v%d, v14" % (V_L, V_L))
e("v_mov_b32 v%d, v%d" % (V_T1, V_L))
e("s_nop 1")
e("v_permlane32_swap_b32 v%d, v%d" % (V_L, V_T1))
e("v_add_f32 v%d, v%d, v%d" % (V_L, V_L, V_T1))
e("v_rcp_f32 v%d, v%d" % (V_L, V_L))
e("s_nop 7"); e("s_nop 3")
for db in range(4):
    for jp in range(2):
        t = S0[0] + 4 * (2 * db + jp)
        for jj in range(2):
            for i in range(4):
                r = O0 + 16 * db + 4 * (2 * jp + jj) + i
                e("v_mul_f32 v%d, v%d, v%d" % (r, r, V_L))
        for jj in range(2):
            r = O0 + 16 * db + 4 * (2 * jp + jj)
            e("v_cvt_pk_bf16_f32 v%d, v%d, v%d" % (t + 2 * jj, r, r + 1))
            e("v_cvt_pk_bf16_f32 v%d, v%d, v%d" % (t + 2 * jj + 1, r + 2, r + 3))
        e("s_nop 1")
        e("v_permlane32_swap_b32 v%d, v%d" % (t, t + 2))
        e("v_permlane32_swap_b32 v%d, v%d" % (t + 1, t + 3))
        e("buffer_store_dwordx4 %s, v%d, s[%d:%d], 0 offen offset:%d" % (vr(t, 4), V_QOFF, S_O, S_O + 3, 64 * db + 32 * jp))
if STAMP:
    e("s_waitcnt vmcnt(0)")
    e("s_memtime s[48:49]"); e("s_memrealtime s[50:51]"); e("s_waitcnt lgkmcnt(0)")
    e("s_sub_u32 s48, s48, s40"); e("s_sub_u32 s50, s50, s42"); e("s_sub_u32 s46, s46, s40")
    e("s_mov_b32 s52, s44"); e("s_mov_b32 s53, s45"); e("s_mov_b32 s54, 0x100000"); e("s_mov_b32 s55, 0x00020000")
    e("s_sub_u32 s60, s60, s40"); e("s_sub_u32 s62, s62, s40")
    e("v_mov_b32 v20, s48"); e("v_mov_b32 v21, s60"); e("v_mov_b32 v22, s46"); e("v_mov_b32 v23, s62")
    e("s_lshl_b32 s56, s2, 3"); e("s_add_u32 s56, s56, s%d" % S_W); e("s_lshl_b32 s56, s56, 4")
    e("v_mov_b32 v24, s56")
    e("v_and_b32 v25, 63, v0"); e("v_cmp_eq_u32 vcc, 0, v25")
    e("s_and_saveexec_b64 s[58:59], vcc")
    e("buffer_store_dwordx4 v[20:23], v24, s[52:55], 0 offen")
    e("s_waitcnt vmcnt(0)")
lab("L_end")
e("s_endpgm")
out.extend(rare)

tail = """.section .rodata,"a"
.p2align 6
.amdhsa_kernel standalone__gqa_softmax__near_ridge_kernel
  .amdhsa_next_free_vgpr 256
  .amdhsa_next_free_sgpr 64
  .amdhsa_accum_offset 256
  .amdhsa_group_segment_fixed_size 0
  .amdhsa_kernarg_size 48
  .amdhsa_user_sgpr_count 2
  .amdhsa_user_sgpr_kernarg_segment_ptr 1
  .amdhsa_system_sgpr_workgroup_id_x 1
.end_amdhsa_kernel
"""
path = sys.argv[1] if len(sys.argv) > 1 else "standalone__gqa_softmax__near_ridge.s"
open(path, "w").write("\n".join(head) + "\n" + "\n".join(out) + "\n" + tail)
```

```python
import sys, os
ABL=os.environ.get('ABL','')
NTF=os.environ.get('NTF','1')

PRIO=os.environ.get('PRIO','')
STAMP=os.environ.get('STAMP','')
NT = 16
KRING = 0
VRING = 65536

out = []
def e(s):
    if ABL=='mem' and (s.startswith('v_mfma') or s.startswith('ds_read') or s.startswith('v_exp') or s.startswith('v_fma') or s.startswith('v_max3') or s.startswith('v_cvt') or (s.startswith('v_mul') ) or s.startswith('v_add_f32')): return
    if ABL.startswith('comp') and s.endswith(' lds'): return
    if ABL=='compnov' and (s.startswith('v_exp') or s.startswith('v_fma') or s.startswith('v_max3') or s.startswith('v_cvt') or (s.startswith('v_mul') ) or s.startswith('v_add_f32')): return
    if ABL=='compmf' and (s.startswith('ds_read') or s.startswith('v_exp') or s.startswith('v_fma') or s.startswith('v_max3') or s.startswith('v_cvt') or (s.startswith('v_mul') ) or s.startswith('v_add_f32')): return
    if ABL=='compnolds' and s.startswith('ds_read'): return
    if ABL=='compnobar' and s.startswith('s_barrier'): return
    if NTF and 'buffer_load' in s and (s.endswith(' lds') or os.environ.get('QNT')):
        fl = os.environ.get('FL',' nt')
        s = (s[:-4] + fl + ' lds') if s.endswith(' lds') else s + fl
    if os.environ.get('ST') and 'buffer_store' in s: s = s + os.environ.get('ST')
    out.append("    " + s)
def lab(s): out.append(s + ":")

V_TID = 0; V_T0 = 1; V_M = 2; V_L = 3; V_MC = 4; V_AL = 5; V_T1 = 6; V_T2 = 7; V_T3 = 8; V_SUM = 9
V_VOK0 = 10; V_VOK1 = 11; V_VOV = 12; V_QOFF = 13; V_OOFF = 14; V_T4 = 15
KADDR = 16
VADDR = 24
Q0 = 32
O0 = 64
S0 = [128, 160]
P0 = 192
KF0 = 208; NKF = 6
VF0 = 232; NVF = 6
S_Q = 12; S_K = 16; S_V = 20; S_O = 24
S_KOFF = 28; S_VOFF = 29; S_CNT = 30; S_W = 31; S_WK = 32; S_WV = 33; S_C = 34; S_THR = 35

def vr(a, n): return "v[%d:%d]" % (a, a + n - 1)

class LG:
    def __init__(s): s.q = []
    def issue(s, tag): s.q.append(tag)
    def wait(s, tag):
        if tag in s.q:
            i = s.q.index(tag)
            n = len(s.q) - 1 - i
            e("s_waitcnt lgkmcnt(%d)" % n)
            s.q = s.q[i + 1:]
lg = LG()

def dma_k(stage):
    e("s_add_u32 m0, s%d, %d" % (S_WK, stage * 16384))
    e("s_nop 0")
    e("buffer_load_dwordx4 v%d, s[%d:%d], s%d offen lds" % (V_VOK0, S_K, S_K + 3, S_KOFF))
    e("buffer_load_dwordx4 v%d, s[%d:%d], s%d offen offset:1024 lds" % (V_VOK1, S_K, S_K + 3, S_KOFF))
    e("s_add_u32 s%d, s%d, 16384" % (S_KOFF, S_KOFF))

def dma_v(stage):
    e("s_add_u32 m0, s%d, %d" % (S_WV, stage * 16384))
    e("s_nop 0")
    e("buffer_load_dwordx4 v%d, s[%d:%d], s%d offen lds" % (V_VOV, S_V, S_V + 3, S_VOFF))
    e("buffer_load_dwordx4 v%d, s[%d:%d], s%d offen offset:1024 lds" % (V_VOV, S_V, S_V + 3, S_VOFF))
    e("s_add_u32 s%d, s%d, 16384" % (S_VOFF, S_VOFF))

def kread(idx, stage):
    b, s = idx >> 3, idx & 7
    f = KF0 + 4 * (idx % NKF)
    e("ds_read_b128 %s, v%d offset:%d" % (vr(f, 4), KADDR + s, stage * 16384 + b * 8192))
    lg.issue(("k", idx))

def vread(idx, stage):
    ks, db = idx >> 2, idx & 3
    f = VF0 + 4 * (idx % NVF)
    e("ds_read_b64_tr_b16 %s, v%d offset:%d" % (vr(f, 2), VADDR + db, stage * 16384 + ks * 4096))
    lg.issue(("v0", idx))
    e("ds_read_b64_tr_b16 %s, v%d offset:%d" % (vr(f + 2, 2), VADDR + db, stage * 16384 + ks * 4096 + 2048))
    lg.issue(("v", idx))

def qk_mfma(idx, sreg):
    b, s = idx >> 3, idx & 7
    f = KF0 + 4 * (idx % NKF)
    d = sreg + 16 * b
    c = "0" if s == 0 else vr(d, 16)
    lg.wait(("k", idx))
    e("v_mfma_f32_32x32x16_bf16 %s, %s, %s, %s" % (vr(d, 16), vr(f, 4), vr(Q0 + 4 * s, 4), c))

def pv_mfma(idx):
    ks, db = idx >> 2, idx & 3
    f = VF0 + 4 * (idx % NVF)
    d = O0 + 16 * db
    lg.wait(("v", idx))
    e("v_mfma_f32_32x32x16_bf16 %s, %s, %s, %s" % (vr(d, 16), vr(f, 4), vr(P0 + 4 * ks, 4), vr(d, 16)))

rare = []
def smax_lead(sc, t):
    ops = []; a = ops.append
    a("v_max3_f32 v%d, v%d, v%d, v%d" % (V_T0, sc, sc + 1, sc + 2))
    a("v_max3_f32 v%d, v%d, v%d, v%d" % (V_T1, sc + 16, sc + 17, sc + 18))
    for i in range(6):
        a("v_max3_f32 v%d, v%d, v%d, v%d" % (V_T0, V_T0, sc + 3 + 2 * i, sc + 4 + 2 * i))
        a("v_max3_f32 v%d, v%d, v%d, v%d" % (V_T1, V_T1, sc + 19 + 2 * i, sc + 20 + 2 * i))
    a("v_max3_f32 v%d, v%d, v%d, v%d" % (V_T0, V_T0, sc + 15, sc + 31))
    a("v_max_f32 v%d, v%d, v%d" % (V_T0, V_T0, V_T1))
    a("v_mov_b32 v%d, v%d" % (V_T1, V_T0))
    a("s_nop 1")
    a("v_permlane32_swap_b32 v%d, v%d" % (V_T0, V_T1))
    a("v_max_f32 v%d, v%d, v%d" % (V_T0, V_T0, V_T1))
    a("v_fma_f32 v%d, v%d, s%d, -v%d" % (V_T1, V_T0, S_C, V_MC))
    a("v_cmp_lt_f32 vcc, s%d, v%d" % (S_THR, V_T1))
    a("s_nop 4")
    a("s_cbranch_vccnz L_rare%d" % t)
    a("L_back%d:" % t)
    r = rare.append
    r("L_rare%d:" % t)
    r("    s_nop 7"); r("    s_nop 7")
    r("    v_max_f32 v%d, v%d, v%d" % (V_M, V_M, V_T0))
    r("    v_mul_f32 v%d, s%d, v%d" % (V_T2, S_C, V_M))
    r("    v_sub_f32 v%d, v%d, v%d" % (V_AL, V_MC, V_T2))
    r("    v_exp_f32 v%d, v%d" % (V_AL, V_AL))
    r("    v_mov_b32 v%d, v%d" % (V_MC, V_T2))
    r("    s_nop 0")
    r("    v_mul_f32 v%d, v%d, v%d" % (V_L, V_L, V_AL))
    r("    v_mul_f32 v14, v14, v%d" % V_AL)
    r("    v_mul_f32 v15, v15, v%d" % V_AL)
    r("    v_sub_f32 v8, 0, v%d" % V_MC)
    r("    v_sub_f32 v9, 0, v%d" % V_MC)
    for i in range(64):
        r("    v_mul_f32 v%d, v%d, v%d" % (O0 + i, O0 + i, V_AL))
    r("    s_branch L_back%d" % t)
    return ops
def em(o):
    if o.endswith(":"): out.append(o)
    else: e(o)

PK=os.environ.get('PK','')
V_NM = 8; V_L2 = 14; S_C2 = 38
def smax_groups(sc, g0, g1):
    ops = []; a = ops.append
    for g in range(g0, g1 + 1):
        if g < g1:
            if PK:
                for i in range(0, 4, 2):
                    r = sc + 4 * g + i
                    a("v_pk_fma_f32 v[%d:%d], v[%d:%d], s[%d:%d], v[%d:%d]" % (r, r + 1, r, r + 1, S_C2, S_C2 + 1, V_NM, V_NM + 1))
            else:
                for i in range(4):
                    r = sc + 4 * g + i
                    a("v_fma_f32 v%d, v%d, s%d, -v%d" % (r, r, S_C, V_MC))
            for i in range(4):
                r = sc + 4 * g + i
                a("v_exp_f32 v%d, v%d" % (r, r))
        if g > g0:
            gg = g - 1
            if g == g1: a("s_nop 0")
            if PK:
                for i in range(0, 4, 2):
                    r = sc + 4 * gg + i
                    a("v_pk_add_f32 v[%d:%d], v[%d:%d], v[%d:%d]" % (V_L2, V_L2 + 1, V_L2, V_L2 + 1, r, r + 1))
            else:
                for i in range(4):
                    a("v_add_f32 v%d, v%d, v%d" % (V_L, V_L, sc + 4 * gg + i))
            a("v_cvt_pk_bf16_f32 v%d, v%d, v%d" % (P0 + 2 * gg, sc + 4 * gg, sc + 4 * gg + 1))
            a("v_cvt_pk_bf16_f32 v%d, v%d, v%d" % (P0 + 2 * gg + 1, sc + 4 * gg + 2, sc + 4 * gg + 3))
    return ops

def tile(t, do_qk, do_dk, do_dv, vm, pre_next):
    e("; ---- tile %d" % t)
    e("s_waitcnt vmcnt(%d)" % vm)
    e("s_barrier")
    scur = S0[t & 1]; snxt = S0[(t + 1) & 1]
    kst = (t + 1) % 4; vst = t % 4
    PRE = 4
    if not do_qk:
        for i in range(4): vread(i, vst)
    lead = smax_lead(scur, t)
    opsA = smax_groups(scur, 0, 4)
    opsB = smax_groups(scur, 4, 8)
    if do_qk:
        plan = [[] for _ in range(16)]
        nl = 5; pl = (len(lead) + nl - 1) // nl
        for i in range(nl): plan[i] = lead[i * pl:(i + 1) * pl]
        pa = (len(opsA) + 8) // 9
        for i in range(9): plan[5 + i] = opsA[i * pa:(i + 1) * pa]
        for i in range(16):
            qk_mfma(i, snxt)
            if i == 0 and do_dk: dma_k(t % 4)
            if i == 1 and do_dv: dma_v((t + 3) % 4)
            if i + PRE < 16: kread(i + PRE, kst)
            elif i + PRE - 16 < 4: vread(i + PRE - 16, vst)
            for o in plan[i]: em(o)
    else:
        for o in lead + opsA: em(o)
        e("s_nop 1")
    if PRIO=='b': e("s_setprio 1")
    per = (len(opsB) + 6) // 7
    for i in range(16):
        pv_mfma(i)
        if i + 4 < 16: vread(i + 4, vst)
        elif pre_next: kread(i - 12, (t + 2) % 4)
        for o in opsB[i * per:(i + 1) * per]: e(o)
        if i == 7: e("s_nop 1")
    if PRIO=='b': e("s_setprio 0")

hdr = open("standalone__gqa_softmax__near_ridge.s.ref").read().split("\n")
head = []
for l in hdr:
    if l.startswith("; @launch"):
        head.append("; @launch grid=(256,1,1) block=(512,1,1) lds=163840")
        continue
    head.append(l)
    if l.startswith("standalone__gqa_softmax__near_ridge_kernel:"): break

e("s_cmp_ge_u32 s2, %d" % (0 if ABL=="empty" else 256))
e("s_cbranch_scc1 L_end")
e("s_load_dwordx8 s[4:11], s[0:1], 0")
if STAMP:
    e("s_load_dwordx2 s[44:45], s[0:1], 40")
    e("s_memtime s[64:65]"); e("s_memrealtime s[66:67]")
e("v_lshrrev_b32 v1, 6, v0")
e("v_and_b32 v15, 63, v0")
e("s_nop 0")
e("v_readfirstlane_b32 s%d, v1" % S_W)
e("v_lshrrev_b32 v6, 4, v15")
e("v_lshl_add_u32 v7, v1, 3, v6")
e("v_and_b32 v8, 15, v15")
e("v_and_b32 v9, 15, v7")
e("v_xor_b32 v9, v8, v9")
e("v_lshlrev_b32 v9, 4, v9")
e("v_lshl_add_u32 v%d, v7, 8, v9" % V_VOK0)
e("v_add_u32 v9, 4, v7")
e("v_and_b32 v9, 15, v9")
e("v_xor_b32 v9, v8, v9")
e("v_lshlrev_b32 v9, 4, v9")
e("v_lshl_add_u32 v%d, v7, 8, v9" % V_VOK1)
e("v_lshlrev_b32 v9, 2, v6")
e("v_xor_b32 v9, v8, v9")
e("v_lshlrev_b32 v9, 4, v9")
e("v_lshl_add_u32 v%d, v7, 8, v9" % V_VOV)
e("v_lshrrev_b32 v6, 5, v15")
e("v_and_b32 v7, 31, v15")
e("v_xor_b32 v8, v8, v6")
for s in range(8):
    e("v_xor_b32 v9, %d, v8" % (2 * s))
    e("v_lshlrev_b32 v9, 4, v9")
    e("v_lshl_add_u32 v%d, v7, 8, v9" % (KADDR + s))
e("v_bfe_u32 v9, v15, 2, 2")
e("v_lshl_add_u32 v8, v6, 2, v9")
e("v_lshlrev_b32 v8, 8, v8")
e("v_bfe_u32 v1, v15, 4, 1")
e("v_lshlrev_b32 v1, 5, v1")
e("v_add_u32 v8, v8, v1")
e("v_and_b32 v1, 3, v15")
e("v_lshlrev_b32 v1, 3, v1")
e("v_add_u32 v8, v8, v1")
e("v_add_u32 v8, %d, v8" % VRING)
for db in range(4):
    e("v_xor_b32 v1, %d, v9" % db)
    e("v_lshl_add_u32 v%d, v1, 6, v8" % (VADDR + db))
e("v_lshrrev_b32 v1, 6, v0")
e("v_lshl_add_u32 v1, v1, 5, v7")
e("v_lshlrev_b32 v1, 8, v1")
e("v_lshl_add_u32 v%d, v6, 4, v1" % V_QOFF)
e("s_waitcnt lgkmcnt(0)")
if STAMP: e("s_memtime s[60:61]")
e("s_mul_i32 s36, s2, 61440")
e("s_lshl_b32 s37, s2, 18")
e("s_add_u32 s%d, s4, s36" % S_Q);  e("s_addc_u32 s%d, s5, 0" % (S_Q + 1))
e("s_mov_b32 s%d, 61440" % (S_Q + 2)); e("s_mov_b32 s%d, 0x00020000" % (S_Q + 3))
e("s_add_u32 s%d, s6, s37" % S_K);  e("s_addc_u32 s%d, s7, 0" % (S_K + 1))
e("s_mov_b32 s%d, 262144" % (S_K + 2)); e("s_mov_b32 s%d, 0x00020000" % (S_K + 3))
e("s_add_u32 s%d, s8, s37" % S_V);  e("s_addc_u32 s%d, s9, 0" % (S_V + 1))
e("s_mov_b32 s%d, 262144" % (S_V + 2)); e("s_mov_b32 s%d, 0x00020000" % (S_V + 3))
e("s_add_u32 s%d, s10, s36" % S_O); e("s_addc_u32 s%d, s11, 0" % (S_O + 1))
e("s_mov_b32 s%d, 61440" % (S_O + 2)); e("s_mov_b32 s%d, 0x00020000" % (S_O + 3))
e("s_lshl_b32 s%d, s%d, 11" % (S_WK, S_W))
e("s_add_u32 s%d, s%d, %d" % (S_WV, S_WK, VRING))
e("s_mov_b32 s%d, 0" % S_KOFF)
e("s_mov_b32 s%d, 0" % S_VOFF)
e("s_mov_b32 s%d, 0x41000000" % S_THR)
e("s_mov_b32 s%d, 0x3e0293ee" % S_C)
e("s_lshl_b32 s40, s%d, 13" % S_W)
e("s_add_u32 s41, s40, 131072")
e("s_add_u32 s42, s40, %d" % (VRING + 49152 - 4 * 8192))
e("s_add_u32 s43, s40, %d" % (49152 - 6 * 8192))
e("s_cmp_lt_u32 s%d, 6" % S_W); e("s_cselect_b32 s43, s42, s43")
e("s_cmp_lt_u32 s%d, 4" % S_W); e("s_cselect_b32 s41, s41, s43")
e("s_mov_b32 s42, 4096")
e("v_and_b32 v128, 63, v0")
e("v_lshrrev_b32 v129, 4, v128")
e("v_and_b32 v130, 15, v128")
e("v_lshrrev_b32 v131, 6, v0")
e("v_lshl_add_u32 v131, v131, 5, v129")
e("v_lshlrev_b32 v131, 8, v131")
for m in range(4):
    e("v_add_u32 v132, %d, v129" % (4 * m))
    e("v_xor_b32 v132, v130, v132")
    e("v_lshl_add_u32 v%d, v132, 4, v131" % (136 + m))
for half in range(2):
    e("s_add_u32 m0, s41, %d" % (4096 * half)); e("s_nop 0")
    for m in range(4):
        e("buffer_load_dwordx4 v%d, s[%d:%d], %s offen offset:%d lds" % (136 + m, S_Q, S_Q + 3, "s42" if half else "0", 1024 * m))
dma_k(0)
dma_k(1)
dma_v(0)
dma_k(2); dma_v(1)
e("v_mov_b32 v%d, 0xff800000" % V_M)
e("v_mov_b32 v%d, 0xff800000" % V_MC)
e("v_mov_b32 v%d, 0" % V_L)
e("v_mov_b32 v14, 0"); e("v_mov_b32 v15, 0"); e("v_mov_b32 v8, 0"); e("v_mov_b32 v9, 0")
e("s_mov_b32 s38, s%d" % S_C); e("s_mov_b32 s39, s%d" % S_C)
for i in range(64): e("v_mov_b32 v%d, 0" % (O0 + i))
for s_ in range(8): e("v_add_u32 v%d, s41, v%d" % (144 + s_, KADDR + s_))
e("s_waitcnt vmcnt(10)")
for s_ in range(8): e("ds_read_b128 %s, v%d" % (vr(Q0 + 4 * s_, 4), 144 + s_))
e("s_waitcnt vmcnt(6) lgkmcnt(0)")
if STAMP: e("s_memtime s[62:63]")
e("s_barrier")
dma_k(3); dma_v(2)
for i in range(4): kread(i, 0)
for i in range(16):
    qk_mfma(i, S0[0])
    if i + 4 < 16: kread(i + 4, 0)
    else: kread(i - 12, 1)
e("s_nop 7"); e("s_nop 7")
if PRIO=='a':
    e("s_cmp_ge_u32 s%d, 4" % S_W); e("s_cbranch_scc0 L_np"); e("s_setprio 1"); lab("L_np")
e("s_mov_b32 s%d, 0" % S_CNT)
if STAMP:
    e("s_memtime s[46:47]"); e("s_waitcnt lgkmcnt(0)")
lab("L_loop")
for t in range(4):
    tile(t, True, True, True, 6, True)
e("s_add_u32 s%d, s%d, 1" % (S_CNT, S_CNT))
e("s_cmp_lt_u32 s%d, 3" % S_CNT)
e("s_cbranch_scc1 L_loop")
tile(12, True, False, True, 6, True)
tile(13, True, False, False, 4, True)
tile(14, True, False, False, 2, False)
tile(15, False, False, False, 0, False)
e("v_add_f32 v14, v14, v15"); e("v_add_f32 v%d, v%d, v14" % (V_L, V_L))
e("v_mov_b32 v%d, v%d" % (V_T1, V_L))
e("s_nop 1")
e("v_permlane32_swap_b32 v%d, v%d" % (V_L, V_T1))
e("v_add_f32 v%d, v%d, v%d" % (V_L, V_L, V_T1))
e("v_rcp_f32 v%d, v%d" % (V_L, V_L))
e("s_nop 7"); e("s_nop 3")
for db in range(4):
    for jp in range(2):
        t = S0[0] + 4 * (2 * db + jp)
        for jj in range(2):
            for i in range(4):
                r = O0 + 16 * db + 4 * (2 * jp + jj) + i
                e("v_mul_f32 v%d, v%d, v%d" % (r, r, V_L))
        for jj in range(2):
            r = O0 + 16 * db + 4 * (2 * jp + jj)
            e("v_cvt_pk_bf16_f32 v%d, v%d, v%d" % (t + 2 * jj, r, r + 1))
            e("v_cvt_pk_bf16_f32 v%d, v%d, v%d" % (t + 2 * jj + 1, r + 2, r + 3))
        e("s_nop 1")
        e("v_permlane32_swap_b32 v%d, v%d" % (t, t + 2))
        e("v_permlane32_swap_b32 v%d, v%d" % (t + 1, t + 3))
        e("buffer_store_dwordx4 %s, v%d, s[%d:%d], 0 offen offset:%d" % (vr(t, 4), V_QOFF, S_O, S_O + 3, 64 * db + 32 * jp))
if STAMP:
    e("s_waitcnt vmcnt(0)")
    e("s_memtime s[48:49]"); e("s_memrealtime s[50:51]"); e("s_waitcnt lgkmcnt(0)")
    e("s_sub_u32 s48, s48, s64"); e("s_sub_u32 s50, s50, s66"); e("s_sub_u32 s46, s46, s64")
    e("s_mov_b32 s52, s44"); e("s_mov_b32 s53, s45"); e("s_mov_b32 s54, 0x100000"); e("s_mov_b32 s55, 0x00020000")
    e("s_sub_u32 s60, s60, s64"); e("s_sub_u32 s62, s62, s64")
    e("v_mov_b32 v20, s48"); e("v_mov_b32 v21, s60"); e("v_mov_b32 v22, s46"); e("v_mov_b32 v23, s62")
    e("s_lshl_b32 s56, s2, 3"); e("s_add_u32 s56, s56, s%d" % S_W); e("s_lshl_b32 s56, s56, 4")
    e("v_mov_b32 v24, s56")
    e("v_and_b32 v25, 63, v0"); e("v_cmp_eq_u32 vcc, 0, v25")
    e("s_and_saveexec_b64 s[58:59], vcc")
    e("buffer_store_dwordx4 v[20:23], v24, s[52:55], 0 offen")
    e("s_waitcnt vmcnt(0)")
lab("L_end")
e("s_endpgm")
out.extend(rare)

tail = """.section .rodata,"a"
.p2align 6
.amdhsa_kernel standalone__gqa_softmax__near_ridge_kernel
  .amdhsa_next_free_vgpr 256
  .amdhsa_next_free_sgpr 72
  .amdhsa_accum_offset 256
  .amdhsa_group_segment_fixed_size 0
  .amdhsa_kernarg_size 48
  .amdhsa_user_sgpr_count 2
  .amdhsa_user_sgpr_kernarg_segment_ptr 1
  .amdhsa_system_sgpr_workgroup_id_x 1
.end_amdhsa_kernel
"""
path = sys.argv[1] if len(sys.argv) > 1 else "standalone__gqa_softmax__near_ridge.s"
open(path, "w").write("\n".join(head) + "\n" + "\n".join(out) + "\n" + tail)
```
